```python
import torch

def _softmax(x, axis=-1):
    return torch.softmax(x, dim=axis)
def _gelu(x):
    return torch.nn.functional.gelu(x, approximate="tanh")
def _silu(x):
    return torch.nn.functional.silu(x)
def _sigmoid(x):
    return torch.sigmoid(x)
def _layernorm(x, axis=-1, eps=1e-5):
    m = x.mean(dim=axis, keepdim=True)
    v = x.var(dim=axis, keepdim=True, unbiased=False)
    return (x - m) / torch.sqrt(v + eps)
def _scatter_add(tgt, idx, src, axis=0):
    return tgt.clone().index_add_(axis, idx, src)
def _segment_sum(src, seg, n):
    out = torch.zeros((n,) + src.shape[1:], dtype=src.dtype)
    return out.index_add_(0, seg, src)
def _pad(x, pw):
    flat = tuple(v for pair in reversed(pw) for v in pair)
    return torch.nn.functional.pad(x, flat)

kernel_name = 'concat_heads__ssm_conv_s4__linear_kernel_hedgehog__prompt'

def setup_inputs():

    _w = (lambda a: (lambda t: t.to(torch.bfloat16) if t.is_floating_point() else t)(torch.as_tensor(a)))
    def _A_setup():
        B, L, D, N = 1, 2048, 640, 128
        A_re = -(lambda _x: torch.exp(torch.as_tensor(_x)))((lambda *s: torch.randn(*s, dtype=torch.bfloat16) * 3.2)(D, N))
        A_im = torch.pi * (lambda *s: torch.randn(*s, dtype=torch.bfloat16) * 0.2)(D, N)
        B_re = (lambda *s: torch.randn(*s, dtype=torch.bfloat16) * 0.4)(D, N)
        B_im = (lambda *s: torch.randn(*s, dtype=torch.bfloat16) * 0.4)(D, N)
        C_re = (lambda *s: torch.randn(*s, dtype=torch.bfloat16) * 0.4)(D, N)
        C_im = (lambda *s: torch.randn(*s, dtype=torch.bfloat16) * 0.4)(D, N)
        log_dt = (lambda *s: torch.randn(*s, dtype=torch.bfloat16) * 0.2)(D) * 0.5 - 4.0
        Dskip = (lambda *s: torch.randn(*s, dtype=torch.bfloat16) * 0.4)(D)
        return {
            "u": _w((lambda *s: torch.randn(*s, dtype=torch.bfloat16) * 0.05)(B, L, D)),
            "A_re": _w(A_re),
            "A_im": _w(A_im),
            "B_re": _w(B_re),
            "B_im": _w(B_im),
            "C_re": _w(C_re),
            "C_im": _w(C_im),
            "log_dt": _w(log_dt),
            "Dskip": _w(Dskip),
        }
    _A_in = _A_setup()

    def _B_setup():
        B, S, D, H = 1, 2048, 640, 32
        Dh = D // H
        return {
            "x": _w((lambda *s: torch.randn(*s, dtype=torch.bfloat16) * 0.4)(B, S, D)),
            "wqkv": _w((lambda *s: torch.randn(*s, dtype=torch.bfloat16) * 0.4)(D, 3 * D)),
            "w_phi": _w((lambda *s: torch.randn(*s, dtype=torch.bfloat16) * 0.4)(H, Dh, Dh) * (Dh ** -0.5)),
            "wo": _w((lambda *s: torch.randn(*s, dtype=torch.bfloat16) * 0.05)(D, D)),
        }
    _B_in = _B_setup()

    return {
        "A_u": _A_in["u"],
        "A_A_re": _A_in["A_re"],
        "A_A_im": _A_in["A_im"],
        "A_B_re": _A_in["B_re"],
        "A_B_im": _A_in["B_im"],
        "A_C_re": _A_in["C_re"],
        "A_C_im": _A_in["C_im"],
        "A_log_dt": _A_in["log_dt"],
        "A_Dskip": _A_in["Dskip"],
        "B_x": _B_in["x"],
        "B_wqkv": _B_in["wqkv"],
        "B_w_phi": _B_in["w_phi"],
        "B_wo": _B_in["wo"],
    }

def reference(A_u, A_A_re, A_A_im, A_B_re, A_B_im, A_C_re, A_C_im, A_log_dt, A_Dskip, B_x, B_wqkv, B_w_phi, B_wo):
    def _A_ref(u, A_re, A_im, B_re, B_im, C_re, C_im, log_dt, Dskip):
        Bsz, L, D = u.shape
        dt = torch.exp(log_dt)[:, None]
        A = A_re + 1j * A_im
        Bc = B_re + 1j * B_im
        Cc = C_re + 1j * C_im
        logdA = dt * A
        dB = dt * Bc
        l = (lambda x, dt: x.to(dt))(torch.arange(L), A_re.dtype)
        P = torch.exp(logdA[:, :, None] * l[None, None, :])
        K = torch.einsum("dn,dnl,dn->dl", Cc, P, dB).real
        L2 = 2 * L
        Kp = _pad(K, ((0, 0), (0, L)))
        up = (lambda x, *d: x.permute(*d))(u, 0, 2, 1)
        up = _pad(up, ((0, 0), (0, 0), (0, L)))
        Kf = (lambda x, axes=(-2,-1): torch.fft.rfft2(x.float(), dim=axes))(Kp[:, None, :], axes=(-2, -1))
        Uf = (lambda x, axes=(-2,-1): torch.fft.rfft2(x.float(), dim=axes))(up[:, :, None, :], axes=(-2, -1))
        Yf = Uf * Kf[None, :, :, :]
        y = (lambda x, s, axes=(-2,-1): torch.fft.irfft2(x, s=s, dim=axes).to(torch.bfloat16))(Yf, (1, L2), axes=(-2, -1))[:, :, 0, :L]
        y = (lambda x, *d: x.permute(*d))(y, 0, 2, 1) + u * Dskip[None, None, :]
        return y

    def _B_ref(x, wqkv, w_phi, wo):
        B, S, D = x.shape
        H = 32; Dh = D // H
        qkv = (lambda x, *d: x.permute(*d))((x @ wqkv).reshape(B, S, 3, H, Dh), 2, 0, 3, 1, 4)
        q, k, v = qkv[0], qkv[1], qkv[2]
        pq = torch.einsum("bhsd,hdf->bhsf", q, w_phi)
        pk = torch.einsum("bhsd,hdf->bhsf", k, w_phi)
        phi_q = torch.concatenate([_softmax(pq, axis=-1), _softmax(-pq, axis=-1)], axis=-1)
        phi_k = torch.concatenate([_softmax(pk, axis=-1), _softmax(-pk, axis=-1)], axis=-1)
        kv = torch.einsum("bhsf,bhsd->bhfd", phi_k, v)
        z  = torch.einsum("bhsf->bhf", phi_k)
        num = torch.einsum("bhqf,bhfd->bhqd", phi_q, kv)
        den = torch.einsum("bhqf,bhf->bhq", phi_q, z)[..., None] + 1e-6
        o = num / den
        return (lambda x, *d: x.permute(*d))(o, 0, 2, 1, 3).reshape(B, S, D) @ wo

    a = _A_ref(A_u, A_A_re, A_A_im, A_B_re, A_B_im, A_C_re, A_C_im, A_log_dt, A_Dskip)
    b = _B_ref(B_x, B_wqkv, B_w_phi, B_wo)
    return torch.concatenate([a, b], axis=-1)
```

```python
import re

_REG = re.compile(r"\b([vs])(\d+)\b|\b([vs])\[(\d+):(\d+)\]|\b(vcc|exec|m0|scc)(?:_lo|_hi)?\b")

def regs_of(tok):
    out = []
    for m in _REG.finditer(tok):
        if m.group(1):
            out.append((m.group(1), int(m.group(2))))
        elif m.group(3):
            out += [(m.group(3), i) for i in range(int(m.group(4)), int(m.group(5)) + 1)]
        else:
            out.append((m.group(6), 0))
    return out

def split_ops(s):
    ops, depth, cur = [], 0, ""
    for ch in s:
        if ch in "[(":
            depth += 1
        if ch in "])":
            depth -= 1
        if ch == "," and depth == 0:
            ops.append(cur.strip()); cur = ""
        else:
            cur += ch
    if cur.strip():
        ops.append(cur.strip())
    return ops

TRANS = ("v_exp_f32", "v_log_f32", "v_rcp_f32", "v_rsq_f32", "v_sqrt_f32", "v_sin_f32", "v_cos_f32")

class Ins:
    __slots__ = ("text", "op", "kind", "w", "r", "ab", "c", "passes", "states", "wide_store", "dpp", "lds_dma")
    def __init__(self, text):
        self.text = text
        t = text.split(";")[0].strip()
        sp = t.split(None, 1)
        op = sp[0]; self.op = op
        rest = sp[1] if len(sp) > 1 else ""
        ops = split_ops(rest)
        self.w, self.r, self.ab, self.c = [], [], [], []
        self.passes = 0; self.states = 1; self.wide_store = []; self.dpp = False; self.lds_dma = False
        def R(i):
            return regs_of(re.sub(r"(op_sel|op_sel_hi|neg_lo|neg_hi|quad_perm):\[[^\]]*\]", "", ops[i])) if i < len(ops) else []
        allr = lambda a: [x for i in range(a, len(ops)) for x in R(i)]
        if op == "s_nop":
            self.kind = "nop"; self.states = int(ops[0], 0) + 1
        elif op.startswith("v_mfma"):
            self.kind = "mfma"
            self.w = R(0); self.ab = R(1) + R(2); self.c = R(3); self.r = self.ab + self.c
            self.passes = 8 if "32x32" in op else 4
        elif op.startswith("v_"):
            self.kind = "trans" if op.replace("_e32", "").replace("_e64", "") in TRANS else "valu"
            if op.startswith("v_permlane") and "swap" in op:
                self.kind = "permlane"; self.w = R(0) + R(1); self.r = R(0) + R(1)
            elif op.startswith("v_readfirstlane") or op.startswith("v_readlane"):
                self.kind = "readlane"; self.w = R(0); self.r = allr(1)
            elif "_co_" in op:
                self.w = R(0) + R(1); self.r = allr(2)
            else:
                self.w = R(0); self.r = allr(1)
                if op.startswith("v_fmac") or op.startswith("v_pk_fmac") or op.startswith("v_dot2c") or op.startswith("v_writelane"):
                    self.r = self.r + R(0)
                if op.startswith("v_cmpx"):
                    self.w = self.w + [("exec", 0)]
            if "dpp" in op or "row_" in rest or "quad_perm" in rest or "wave_" in rest:
                self.dpp = True; self.r = self.r + R(0)
        elif op.startswith("ds_"):
            self.kind = "ds"
            if op.startswith("ds_read") or "permute" in op or "swizzle" in op or "_rtn" in op:
                self.w = R(0); self.r = allr(1)
            else:
                self.r = allr(0)
        elif op.startswith("buffer_") or op.startswith("global_"):
            self.kind = "vmem"
            words = rest.split()
            if "lds" in words or "_lds_" in op:
                self.r = allr(0) + [("m0", 0)]; self.lds_dma = True
            elif "_load" in op:
                self.w = R(0); self.r = allr(1)
            else:
                self.r = allr(0)
                if "atomic" in op and "sc0" in words:
                    self.w = R(0)
                if "x4" in op or "x3" in op:
                    self.wide_store = R(0) if op.startswith("buffer_") else R(1)
        elif op.startswith("s_"):
            self.kind = "salu"
            if op.startswith("s_cbranch") or op in ("s_branch", "s_endpgm", "s_setpc_b64", "s_swappc_b64"):
                self.kind = "branch"
            elif op.startswith("s_cmp") or op in ("s_waitcnt", "s_barrier", "s_setprio", "s_sleep") or op.startswith("s_bitcmp"):
                self.r = allr(0)
            else:
                self.w = R(0); self.r = allr(1)
                if "saveexec" in op:
                    self.w = self.w + [("exec", 0)]
        else:
            raise ValueError("unknown op " + text)

VALU_KINDS = ("valu", "trans", "permlane", "readlane")

def required(p, c):
    need = 0
    pw = set(p.w)
    if p.kind == "mfma":
        big = {4: 8, 8: 12}[p.passes]
        if c.kind == "mfma":
            if pw & set(c.ab):
                need = max(need, big)
            if pw & set(c.c):
                if not (c.c == p.w and c.op == p.op):
                    need = max(need, {4: 6, 8: 10}[p.passes])
            elif pw & set(c.w):
                need = max(need, big)
        elif c.kind in VALU_KINDS or c.kind in ("ds", "vmem"):
            if pw & (set(c.r) | set(c.w)):
                need = max(need, big)
            if c.kind in VALU_KINDS and set(p.c) & set(c.w):
                need = max(need, {4: 3, 8: 7}[p.passes])
    elif p.kind in VALU_KINDS:
        vw = {x for x in pw if x[0] == "v"}
        sw = pw - vw
        if c.kind == "mfma":
            if vw & set(c.r):
                need = max(need, 2)
            if ("exec", 0) in sw:
                need = max(need, 4)
        if c.kind == "permlane" and vw & set(c.r):
            need = max(need, 2)
        if c.kind == "readlane" and vw & set(c.r):
            need = max(need, 1)
        if c.kind in VALU_KINDS and c.dpp and vw & set(c.r):
            need = max(need, 2)
        if p.kind == "trans" and c.kind in VALU_KINDS + ("ds", "vmem") and vw & set(c.r):
            need = max(need, 1)
        if "op_sel" in p.text and not p.op.startswith("v_pk") and c.kind in VALU_KINDS and vw & (set(c.r) | set(c.w)):
            need = max(need, 1)
        if sw:
            if c.kind in VALU_KINDS and sw & set(c.r):
                need = max(need, 4 if c.kind == "readlane" else 2)
            if c.kind == "vmem" and sw & set(c.r):
                need = max(need, 5)
            if c.kind == "salu" and sw & set(c.r):
                need = max(need, 1)
            if ("exec", 0) in sw and c.kind in ("permlane", "readlane"):
                need = max(need, 4)
            if ("exec", 0) in sw and c.dpp:
                need = max(need, 5)
            if c.kind == "branch" and ("vcc" in c.op and ("vcc", 0) in sw or "exec" in c.op and ("exec", 0) in sw):
                need = max(need, 5)
    elif p.kind == "salu":
        if ("m0", 0) in pw and c.lds_dma:
            need = max(need, 1)
    elif p.kind == "vmem" and p.wide_store:
        if set(p.wide_store) & set(c.w):
            need = max(need, 2)
    return need

MAXDIST = 12

class Asm:
    def __init__(self):
        self.items = []
    def __call__(self, text):
        for ln in text.split("\n"):
            ln = ln.strip()
            if not ln or ln.startswith(";"):
                continue
            if re.match(r"^[\w.$]+:$", ln):
                self.items.append(("label", ln[:-1]))
            elif ln.startswith("."):
                self.items.append(("raw", ln))
            else:
                self.items.append(Ins(ln))
    def comment(self, t):
        self.items.append(("raw", "; " + t))
    def render(self):
        out = []
        hist = []
        nops = 0
        def flush_all():
            nonlocal nops
            worst = 0
            d = 0
            for ins in reversed(hist):
                lim = 0
                if ins.kind == "mfma":
                    lim = {4: 8, 8: 12}[ins.passes]
                elif ins.kind in VALU_KINDS:
                    lim = 5 if any(x[0] != "v" for x in ins.w) else 2
                elif ins.kind == "vmem" and ins.wide_store:
                    lim = 2
                elif ins.kind == "salu" and ("m0", 0) in ins.w:
                    lim = 1
                worst = max(worst, lim - d)
                d += ins.states
                if d > MAXDIST:
                    break
            if worst > 0:
                out.append(f"    s_nop {worst-1}"); hist.append(Ins(f"s_nop {worst-1}")); nops += 1
        for it in self.items:
            if isinstance(it, tuple):
                if it[0] == "label":
                    flush_all()
                    out.append(it[1] + ":")
                else:
                    out.append(it[1])
                continue
            if it.kind == "branch" and it.op != "s_endpgm":
                flush_all()
            d = 0; pad = 0
            for ins in reversed(hist):
                pad = max(pad, required(ins, it) - d)
                d += ins.states
                if d > MAXDIST:
                    break
            if pad > 0:
                out.append(f"    s_nop {pad-1}"); hist.append(Ins(f"s_nop {pad-1}")); nops += 1
            out.append("    " + it.text)
            hist.append(it)
            if len(hist) > 40:
                del hist[:20]
        self.nops = nops
        return "\n".join(out) + "\n"

def vr(a, n=1):
    return f"v{a}" if n == 1 else f"v[{a}:{a+n-1}]"
def sr(a, n=1):
    return f"s{a}" if n == 1 else f"s[{a}:{a+n-1}]"
```

```python
from dsl import *
from genb import *
import genb

M32 = "v_mfma_f32_32x32x16_bf16"
REG = 20480
RS = 528
UB = 0
DOo = 7136
DEo = DOo - 1220
MEo = 8320
MOo = MEo + 960
YB = 10240
KZ0, KZ1 = 5904, 10240
CD = 560
ARR = {"R4": (0, 80), "R8": (64, 80), "R12": (128, 80), "R16": (192, 80), "S8": (256, 128), "S16": (336, 128), "T2": (416, 80)}

def cmul(a, d, x, y):
    a(f"v_pk_mul_f32 v[{d}:{d+1}], v[{x}:{x+1}], v[{y}:{y+1}] op_sel:[0,0] op_sel_hi:[1,0]")
    a(f"v_pk_fma_f32 v[{d}:{d+1}], v[{x}:{x+1}], v[{y}:{y+1}], v[{d}:{d+1}] op_sel:[1,1,0] op_sel_hi:[0,1,1] neg_lo:[1,0,0]")
def cmul2(a, d, x, y):
    for m in (0, 2):
        a(f"v_pk_mul_f32 v[{d+m}:{d+m+1}], v[{x+m}:{x+m+1}], v[{y+m}:{y+m+1}] op_sel:[0,0] op_sel_hi:[1,0]")
    for m in (0, 2):
        a(f"v_pk_fma_f32 v[{d+m}:{d+m+1}], v[{x+m}:{x+m+1}], v[{y+m}:{y+m+1}], v[{d+m}:{d+m+1}] op_sel:[1,1,0] op_sel_hi:[0,1,1] neg_lo:[1,0,0]")

def gen_a(a, opts):
    dbg = opts.get("dbg")
    sU = 4
    P0 = 64 if not genb.PROF[0] else 64
    sP = 40
    s_aid, s_cbk, s_j, s_w, s_d, s_reg = 36, 37, 38, 39, 58, 59
    t = [8, 9, 10, 11, 12, 13]
    sM = 14
    s_sp = 15
    sEX = 60
    a("L_A:")
    a(f"""
    s_cmp_ge_u32 s2, {NB+NA}
    s_cbranch_scc1 L_A_end
    """)
    prof_begin(a)
    a(f"""
    s_load_dwordx16 s[{sP}:{sP+15}], s[0:1], 0
    s_load_dwordx2 s[{sP+16}:{sP+17}], s[0:1], 64
    s_load_dwordx2 s[{sO}:{sO+1}], s[0:1], 104
    s_load_dwordx2 s[{sD}:{sD+1}], s[0:1], 112
    s_load_dwordx2 s[{sWS}:{sWS+1}], s[0:1], 120
    v_lshrrev_b32 v2, 6, v0
    v_and_b32 v1, 63, v0
    v_readfirstlane_b32 s{s_w}, v2
    s_sub_u32 s{s_aid}, s2, {NB}
    s_and_b32 s{t[0]}, s{s_aid}, 7
    s_mul_i32 s{t[0]}, s{t[0]}, 20
    s_lshr_b32 s{t[1]}, s{s_aid}, 3
    s_add_u32 s{t[0]}, s{t[0]}, s{t[1]}
    s_lshr_b32 s{s_cbk}, s{t[0]}, 4
    s_and_b32 s{s_j}, s{t[0]}, 15
    s_lshl_b32 s{s_d}, s{t[0]}, 2
    s_add_u32 s{s_d}, s{s_d}, s{s_w}
    s_mul_i32 s{s_reg}, s{s_w}, {REG}
    s_mov_b32 s{sM}, 0xffff0000
    """)
    srd(a, sWS, WS_SIZE); srd(a, sD, 256); srd(a, sO, 5242880); srd(a, sU, 2621440)
    a(f"""
    v_lshrrev_b32 v2, 3, v1
    v_mul_u32_u24 v2, 1280, v2
    v_and_b32 v3, 7, v1
    v_lshl_add_u32 v2, v3, 4, v2
    s_lshl_b32 s{t[0]}, s{s_j}, 2
    s_add_u32 s{t[0]}, s{t[0]}, s{s_w}
    s_mul_i32 s{t[1]}, s{t[0]}, 40960
    s_lshl_b32 s{t[2]}, s{s_cbk}, 7
    s_add_u32 s{t[1]}, s{t[1]}, s{t[2]}
    s_lshl_b32 s{t[3]}, s{s_d}, 8
    v_lshl_add_u32 v3, v1, 2, s{t[3]}
    s_lshl_b32 s{t[3]}, s{s_d}, 1
    v_mov_b32 v4, s{t[3]}
    v_lshlrev_b32 v5, 4, v0
    v_mov_b32 v8, -1
    v_mov_b32 v9, -1
    v_mov_b32 v10, -1
    v_mov_b32 v11, -1
    s_mul_i32 s{t[4]}, s{s_aid}, 24576
    s_waitcnt lgkmcnt(0)
    s_mov_b32 s{sU}, s{sP}
    s_mov_b32 s{sU+1}, s{sP+1}
    """)
    for i in range(4):
        a(f"s_add_u32 m0, s{s_reg}, {1024*i}")
        a(f"buffer_load_dwordx4 v2, {S(sU)}, s{t[1]} offen lds")
        if i < 3: a(f"s_add_u32 s{t[1]}, s{t[1]}, 10240")
    PR = 56
    for k in range(6):
        a(f"global_load_dword v{PR+k}, v3, s[{sP+2+2*k}:{sP+3+2*k}]")
    a(f"global_load_ushort v{PR+6}, v4, s[{sP+14}:{sP+15}]")
    a(f"global_load_ushort v{PR+7}, v4, s[{sP+16}:{sP+17}]")
    for i in range(6):
        a(f"buffer_store_dwordx4 v[8:11], v5, {S(sWS)}, s{t[4]} offen sc1")
        if i < 5: a(f"s_add_u32 s{t[4]}, s{t[4]}, 4096")
    BX = 16
    boxes = [(11, 13), (6, 10), (3, 5), (5, 11), (4, 12), (12, 13)]
    a(f"""
    v_lshrrev_b32 v6, 4, v1
    v_lshlrev_b32 v6, 3, v6
    v_and_b32 v7, 15, v1
    v_sub_u32 v6, v6, v7
    v_add_u32 v6, 15, v6
    v_min_u32 v6, 31, v6
    s_mov_b32 s{t[5]}, 0x10001
    """)
    for bi, (lo, hi) in enumerate(boxes):
        mask = ((1 << (hi - lo + 1)) - 1) << (lo + 15)
        b = BX + 4 * bi
        a(f"s_mov_b32 s{t[3]}, {mask}")
        a(f"v_lshrrev_b32 v7, v6, s{t[3]}")
        a(f"v_and_b32 v7, 0xff, v7")
        a(f"v_lshl_or_b32 v7, v7, 15, v7")
        for i in range(4):
            if i: a(f"v_lshrrev_b32 v{b+i}, {2*i}, v7")
            a(f"v_and_b32 v{b+i}, s{t[5]}, v{b+i if i else 7}")
            a(f"v_mul_u32_u24 v{b+i}, 0x3f80, v{b+i}")
    a(f"""
    v_bfe_u32 v6, v1, 2, 2
    v_lshlrev_b32 v6, 7, v6
    v_lshrrev_b32 v7, 4, v1
    v_lshl_add_u32 v6, v7, 5, v6
    v_and_b32 v7, 3, v1
    v_lshl_add_u32 v6, v7, 3, v6
    v_add_u32 v6, s{s_reg}, v6
    v_lshlrev_b32 v7, 4, v1
    s_lshl_b32 s{t[1]}, s{s_cbk}, 18
    s_lshl_b32 s{t[0]}, s{t[0]}, 12
    s_add_u32 s{t[0]}, s{t[0]}, s{t[1]}
    s_add_u32 s{t[0]}, s{t[0]}, {WS_UT}
    s_waitcnt vmcnt(14)
    """)
    UT = 40
    for tb in range(4):
        for hf in range(2):
            a(f"{TR} v[{UT+4*tb+2*hf}:{UT+4*tb+2*hf+1}], v6 offset:{1024*tb + 512*hf}")
    for tb in range(4):
        a(f"s_waitcnt lgkmcnt({6-2*tb})")
        a(f"buffer_store_dwordx4 {vr(UT+4*tb,4)}, v7, {S(sWS)}, s{t[0]} offen offset:{1024*tb} sc1")
    stamp(a, "ut")
    a("s_waitcnt vmcnt(10)")
    AL, BR, CB, CC = 64, 66, 68, 72
    E1, E8, E256 = 76, 80, 84
    DT, T0, T1, T2 = 12, 13, 14, 15
    DSK = 63
    a(f"""
    v_lshlrev_b32 v{T0}, 16, v{PR+6}
    s_mov_b32 s{t[1]}, 0x3fb8aa3b
    s_mov_b32 s{t[2]}, 0x32a57060
    v_mul_f32 v{T1}, s{t[1]}, v{T0}
    v_fma_f32 v{T2}, v{T0}, s{t[1]}, -v{T1}
    v_fma_f32 v{T2}, v{T0}, s{t[2]}, v{T2}
    v_exp_f32 v{T1}, v{T1}
    v_mul_f32 v{T2}, 0x3f317218, v{T2}
    v_fma_f32 v{T1}, v{T1}, v{T2}, v{T1}
    v_cvt_pk_bf16_f32 v{DT}, v{T1}, v{T1}
    v_and_b32 v{DT}, s{sM}, v{DT}
    v_lshlrev_b32 v{DSK}, 16, v{DSK}
    v_lshlrev_b32 v{AL}, 16, v{PR}
    v_and_b32 v{AL+1}, s{sM}, v{PR}
    v_lshlrev_b32 v{BR}, 16, v{PR+1}
    v_and_b32 v{BR+1}, s{sM}, v{PR+1}
    v_lshlrev_b32 v{CB}, 16, v{PR+2}
    v_lshlrev_b32 v{CB+1}, 16, v{PR+3}
    v_and_b32 v{CB+2}, s{sM}, v{PR+2}
    v_and_b32 v{CB+3}, s{sM}, v{PR+3}
    v_lshlrev_b32 v{CC}, 16, v{PR+4}
    v_lshlrev_b32 v{CC+1}, 16, v{PR+5}
    v_and_b32 v{CC+2}, s{sM}, v{PR+4}
    v_and_b32 v{CC+3}, s{sM}, v{PR+5}
    """)
    for r in (AL, BR, CB, CB + 2):
        a(f"v_pk_mul_f32 v[{r}:{r+1}], v[{r}:{r+1}], v[{DT}:{DT+1}] op_sel:[0,0] op_sel_hi:[1,0]")
    a(f"""
    v_mul_f32 v{AL}, s{t[1]}, v{AL}
    v_mul_f32 v{AL+1}, s{t[1]}, v{AL+1}
    v_mul_f32 v{BR}, 0.15915494309189535, v{BR}
    v_mul_f32 v{BR+1}, 0.15915494309189535, v{BR+1}
    """)
    for E, lam in ((E1, 1.0), (E8, 8.0), (E256, 256.0)):
        import struct
        lit = "0x%08x" % struct.unpack("<I", struct.pack("<f", lam))[0]
        for m in range(2):
            a(f"""
            v_mul_f32 v{DT}, {lit}, v{AL+m}
            v_mul_f32 v{T1}, {lit}, v{BR+m}
            v_exp_f32 v{DT}, v{DT}
            v_fract_f32 v{T1}, v{T1}
            v_cos_f32 v{E+2*m}, v{T1}
            v_sin_f32 v{E+2*m+1}, v{T1}
            v_pk_mul_f32 v[{E+2*m}:{E+2*m+1}], v[{E+2*m}:{E+2*m+1}], v[{DT}:{DT+1}] op_sel:[0,0] op_sel_hi:[1,0]
            """)
    a(f"""
    s_waitcnt vmcnt(0)
    s_barrier
    v_mov_b32 v2, s{s_aid}
    v_mov_b32 v3, {OOB}
    v_cmp_eq_u32 vcc, 0, v0
    v_cndmask_b32 v2, v3, v2, vcc
    v_mov_b32 v3, 1
    buffer_store_byte v3, v2, {S(sD)}, 0 offen sc1
    """)
    stamp(a, "flag")
    vGW, vGR = 2, 3
    a(f"""
    v_lshl_add_u32 v{vGW}, v1, 3, s{s_reg}
    v_and_b32 v4, 31, v1
    v_mul_u32_u24 v{vGR}, {RS}, v4
    v_lshrrev_b32 v5, 5, v1
    v_lshl_add_u32 v{vGR}, v5, 4, v{vGR}
    v_add_u32 v{vGR}, s{s_reg}, v{vGR}
    """)
    pk = [8, 10]; pki = [0]
    def put(val, rows, neg=False):
        p = pk[pki[0] & 1]; pki[0] += 1
        ng = "-" if neg else ""
        a(f"v_cvt_pk_bf16_f32 v{p}, v{val}, {ng}v{val+1}")
        a(f"v_cvt_pk_bf16_f32 v{p+1}, v{val+2}, {ng}v{val+3}")
        for r in rows:
            a(f"ds_write_b64 v{vGW}, v[{p}:{p+1}] offset:{RS*r}")
    H = [88 + 4 * i for i in range(6)]
    He = {0: 128, 2: 132, 4: 136, 6: 140, 8: 144}
    cmul2(a, He[0], CC, CB); put(He[0], [7])
    prev = He[0]
    for i in range(1, 8):
        d = He[i] if i % 2 == 0 else H[(i // 2) % 2]
        cmul2(a, d, prev, E1); put(d, [7 - i]); prev = d
    cmul2(a, He[8], He[0], E8)
    grow = {0: [15, 14], 2: [13], 4: [12, 11, 10], 6: [9], 8: [8]}
    G = {0: H[2], 4: H[3], 2: H[0], 6: H[1], 8: H[0]}
    for e in (0, 4, 2, 6, 8):
        cmul2(a, G[e], He[e], E256); put(G[e], grow[e])
    cmul2(a, H[4], G[0], E256); put(H[4], [16])
    cmul2(a, H[5], G[4], E256); put(H[5], [18])
    cmul2(a, H[0], H[4], E256); put(H[0], [17])
    cmul2(a, H[1], H[5], E256); put(H[1], [19])
    prev = H[0]
    for k in range(5):
        d = H[2 + (k & 1)]
        cmul2(a, d, prev, E256); put(d, [20 + k]); prev = d
    HF, LF, KA = 128, 192, 112
    for ks in range(16):
        a(f"ds_read_b128 {vr(HF+4*ks,4)}, v{vGR} offset:{32*ks}")
    stamp(a, "hi")
    a(f"""
    v_min_u32 v4, 39, v1
    v_lshlrev_b32 v4, 2, v4
    s_mov_b32 s{s_sp}, 0
    s_mov_b32 s{t[5]}, 0x01010101
    L_A_poll:
    buffer_load_dword v5, v4, {S(sD)}, 0 offen sc1
    s_add_u32 s{s_sp}, s{s_sp}, 1
    s_waitcnt vmcnt(0)
    v_cmp_ne_u32 vcc, s{t[5]}, v5
    s_cmp_ge_u32 s{s_sp}, {SPIN_MAX}
    s_cbranch_scc1 L_A_poll_done
    s_cbranch_vccnz L_A_poll
    L_A_poll_done:
    v_lshrrev_b32 v4, 2, v0
    v_lshlrev_b32 v5, 10, v4
    v_and_b32 v6, 3, v0
    v_lshl_add_u32 v5, v6, 4, v5
    s_lshl_b32 s{t[0]}, s{s_cbk}, 18
    s_lshl_b32 s{t[1]}, s{s_j}, 6
    s_add_u32 s{t[0]}, s{t[0]}, s{t[1]}
    s_add_u32 s{t[0]}, s{t[0]}, {WS_UT}
    """)
    for i in range(4):
        a(f"buffer_load_dwordx4 {vr(UT+4*i,4)}, v5, {S(sWS)}, s{t[0]} offen sc1")
        if i < 3: a(f"s_add_u32 s{t[0]}, s{t[0]}, 65536")
    if genb.PROF[0]: a(f"s_mov_b32 s6, s{s_sp}")
    stamp(a, "poll")
    a(f"""
    v_mul_u32_u24 v7, {REG}, v6
    v_lshrrev_b32 v5, 3, v4
    v_mul_u32_u24 v5, 144, v5
    v_and_b32 v4, 7, v4
    v_lshl_add_u32 v5, v4, 4, v5
    v_add_u32 v7, v7, v5
    """)
    a(f"v_mov_b32 v8, 0x3f80\nv_mov_b32 v9, 0x3f80\nds_write_b64 v{vGW}, v[8:9]")
    pki[0] = 1
    put(E8, [1], True)
    prev = E8
    for j in range(2, 32):
        d = H[j & 1]
        cmul2(a, d, prev, E8); put(d, [j], True); prev = d
    for ks in range(16):
        a(f"ds_read_b128 {vr(LF+4*ks,4)}, v{vGR} offset:{32*ks}")
    for ks in range(16):
        a(f"s_waitcnt lgkmcnt({15-ks})")
        D = vr(KA, 16)
        a(f"{M32} {D}, {vr(HF+4*ks,4)}, {vr(LF+4*ks,4)}, {'0' if ks == 0 else D}")
    a("s_barrier")
    stamp(a, "kgen")
    a(f"""
    v_mov_b32 v8, 0
    v_mov_b32 v9, 0
    v_mov_b32 v10, 0
    v_mov_b32 v11, 0
    v_lshl_add_u32 v2, v1, 4, s{s_reg}
    ds_write_b128 v2, v[8:11]
    ds_write_b128 v2, v[8:11] offset:272
    """)
    for off in (5904, 6928, 7952, 8976, 9216, YB, YB + 1024, YB + 1152):
        a(f"ds_write_b128 v2, v[8:11] offset:{off}")
    a("s_waitcnt vmcnt(0)")
    for i in range(4):
        a(f"ds_write_b128 v7, {vr(UT+4*i,4)} offset:{UB + 144*9 + 1152*i}")
    a(f"""
    v_and_b32 v4, 31, v1
    v_lshrrev_b32 v5, 5, v1
    v_lshlrev_b32 v6, 3, v5
    v_lshlrev_b32 v3, 4, v4
    v_sub_u32 v6, v6, v3
    v_add_u32 v6, s{s_reg}, v6
    v_add_u32 v6, {DEo + 2*(553-256)}, v6
    v_cmp_eq_u32 vcc, 32, v1
    v_cndmask_b32 v8, 0, v{DSK}, vcc
    v_add_f32 v{KA+3}, v{KA+3}, v8
    """)
    dO = DOo - DEo - 2
    for q, off in ((0, 512), (1, 0)):
        k = KA + 4 * q
        a(f"""
        v_cvt_pk_bf16_f32 v8, v{k}, v{k+1}
        v_cvt_pk_bf16_f32 v9, v{k+2}, v{k+3}
        v_cvt_pk_bf16_f32 v10, v{k+1}, v{k+2}
        ds_write_b64 v6, v[8:9] offset:{off + dO}
        ds_write_b16 v6, v8 offset:{off}
        ds_write_b32 v6, v10 offset:{off + 2}
        ds_write_b16_d16_hi v6, v9 offset:{off + 6}
        """)
    def el(arr, mu):
        o, c = ARR[arr]; return o + c - mu
    A_tab = {(0, 0): el("R16", 47), (0, 1): el("R8", 48), (1, 0): el("S16", 79), (1, 1): el("S8", 80)}
    B_tab = {(0, 0): el("R4", 48), (0, 1): el("R12", 48), (1, 0): el("S16", 111), (1, 1): el("S8", 112)}
    a(f"""
    v_and_b32 v3, 1, v1
    v_cmp_eq_u32 vcc, 1, v3
    v_cmp_gt_u32 s[{sEX}:{sEX+1}], 32, v1
    v_and_b32 v3, 30, v1
    v_subrev_u32 v3, s{s_reg}, v3
    """)
    for dst, tab in ((12, A_tab), (13, B_tab)):
        a(f"""
        v_mov_b32 v8, {MEo + 2*tab[(0,0)]}
        v_mov_b32 v9, {MEo + 2*tab[(0,1)]}
        v_cndmask_b32 v8, v8, v9, vcc
        v_mov_b32 v9, {MEo + 2*tab[(1,0)]}
        v_mov_b32 v10, {MEo + 2*tab[(1,1)]}
        v_cndmask_b32 v9, v9, v10, vcc
        v_cndmask_b32 v8, v9, v8, s[{sEX}:{sEX+1}]
        v_sub_u32 v{dst}, v8, v3
        """)
    mO = MOo - MEo - 2
    a(f"""
    v_cvt_pk_bf16_f32 v8, v{KA+8}, v{KA+9}
    v_cvt_pk_bf16_f32 v9, v{KA+10}, v{KA+11}
    v_cvt_pk_bf16_f32 v10, v{KA+12}, v{KA+8}
    ds_write_b16_d16_hi v12, v8
    ds_write_b16_d16_hi v12, v8 offset:{mO}
    ds_write_b16 v13, v9 offset:32
    ds_write_b16 v13, v9 offset:{32+mO}
    ds_write_b16_d16_hi v13, v9
    ds_write_b16_d16_hi v13, v9 offset:{mO}
    v_mov_b32 v11, s{s_reg}
    s_mov_b32 exec_lo, -2
    s_mov_b32 exec_hi, -2
    ds_write_b16 v12, v8 offset:32
    ds_write_b16 v12, v8 offset:{32+mO}
    s_mov_b64 exec, 1
    """)
    for tap in (512, 513, 514):
        a(f"ds_write_b16 v11, v8 offset:{DEo + 2*(CD-tap)}")
        a(f"ds_write_b16 v11, v8 offset:{DOo + 2*(CD-tap-1)}")
    a(f"ds_write_b16 v11, v10 offset:{MEo + 2*el('S16',127)}")
    a(f"ds_write_b16 v11, v10 offset:{MOo + 2*el('S16',127) - 2}")
    a(f"s_mov_b32 exec_hi, 1\ns_mov_b32 exec_lo, 0")
    for arr, mu in (("R16", 63), ("T2", 64)):
        a(f"ds_write_b16 v11, v8 offset:{MEo + 2*el(arr,mu)}")
        a(f"ds_write_b16 v11, v8 offset:{MOo + 2*el(arr,mu) - 2}")
    a("s_mov_b64 exec, -1")
    if dbg == "kacc": dump(a, range(KA, KA + 16), 2)
    vMK, vU16, vU24, vYW, vDA, vDA2, vUB, vYR = 2, 3, 6, 7, 8, 9, 10, 11
    a(f"""
    v_and_b32 v12, 15, v1
    v_lshrrev_b32 v13, 4, v1
    v_lshlrev_b32 v14, 3, v13
    v_lshlrev_b32 v15, 1, v12
    v_sub_u32 v{vMK}, v14, v15
    v_and_b32 v15, 1, v1
    v_mul_u32_u24 v15, {mO}, v15
    v_add3_u32 v{vMK}, v{vMK}, v15, s{s_reg}
    v_add_u32 v{vMK}, {MEo}, v{vMK}
    v_lshl_add_u32 v14, v12, 4, v14
    v_add_u32 v15, 48, v14
    v_lshrrev_b32 v{vU16}, 6, v15
    v_lshlrev_b32 v{vU16}, 4, v{vU16}
    v_lshl_add_u32 v{vU16}, v15, 1, v{vU16}
    v_add_u32 v{vU16}, s{s_reg}, v{vU16}
    v_add_u32 v15, 40, v14
    v_lshrrev_b32 v{vU24}, 6, v15
    v_lshlrev_b32 v{vU24}, 4, v{vU24}
    v_lshl_add_u32 v{vU24}, v15, 1, v{vU24}
    v_add_u32 v{vU24}, s{s_reg}, v{vU24}
    v_lshlrev_b32 v{vYW}, 6, v12
    v_lshl_add_u32 v{vYW}, v13, 4, v{vYW}
    v_lshrrev_b32 v15, 2, v12
    v_lshl_add_u32 v{vYW}, v15, 4, v{vYW}
    v_add_u32 v{vYW}, s{s_reg}, v{vYW}
    v_lshlrev_b32 v14, 4, v5
    v_lshlrev_b32 v15, 1, v4
    v_sub_u32 v{vDA}, v14, v15
    v_and_b32 v15, 1, v1
    v_mul_u32_u24 v15, {dO}, v15
    v_add3_u32 v{vDA}, v{vDA}, v15, s{s_reg}
    v_add_u32 v{vDA}, {DEo + 2*(CD - 16*33)}, v{vDA}
    v_add_u32 v{vDA2}, 576, v{vDA}
    v_mul_u32_u24 v{vUB}, 144, v4
    v_add3_u32 v{vUB}, v{vUB}, v14, s{s_reg}
    v_mul_u32_u24 v{vYR}, 272, v4
    v_add3_u32 v{vYR}, v{vYR}, v14, s{s_reg}
    s_waitcnt lgkmcnt(0)
    s_barrier
    """)
    stamp(a, "img")
    KS = 40
    UF = 84
    AC2 = 132
    GT = 156
    WO_ = 212
    def khalf(r, arr, dl):
        o, c = ARR[arr]
        off = (o + c - 16 * dl) // 2
        a(f"ds_read2_b32 v[{r}:{r+1}], v{vMK} offset0:{off} offset1:{off+1}")
    for blk in range(6):
        a(f"ds_read_b128 {vr(UF+8*blk,4)}, v{vU16} offset:{UB + 144*8 + 576*blk}")
        a(f"ds_read_b128 {vr(UF+8*blk+4,4)}, v{vU24} offset:{UB + 144*8 + 576*blk}")
    for i, dl in enumerate((2, 3, 4)):
        khalf(KS + 4 * i, "R4", dl); khalf(KS + 4 * i + 2, "R8", dl)
        khalf(KS + 12 + 4 * i, "R12", dl); khalf(KS + 12 + 4 * i + 2, "R16", dl)
    for i, dl in enumerate((4, 5, 6, 7)):
        khalf(KS + 24 + 4 * i, "S8", dl); khalf(KS + 24 + 4 * i + 2, "S16", dl)
    khalf(KS + 40, "T2", 4)
    a("s_waitcnt lgkmcnt(15)")
    tiles = [(0, 0), (1, 0), (2, 0), (1, 1), (3, 0), (4, 1), (5, 0)]
    def gen(blk):
        g = GT + 28 * (blk & 1)
        for i, (bx, uf) in enumerate(tiles[:7 if blk < 4 else 4]):
            a(f"{MF32} {vr(g+4*i,4)}, {vr(UF+8*blk+4*uf,4)}, {vr(BX+4*bx,4)}, 0")
    def cvt(blk):
        g = GT + 28 * (blk & 1); w = WO_ + 16 * (blk & 1)
        for i in range(7 if blk < 4 else 4):
            a(f"v_cvt_pk_bf16_f32 v{w+2*i}, v{g+4*i}, v{g+4*i+1}")
            a(f"v_cvt_pk_bf16_f32 v{w+2*i+1}, v{g+4*i+2}, v{g+4*i+3}")
    started = set()
    def mm(op, nt, A, B, n):
        D = vr(AC2 + 4 * (nt - 2), 4)
        c = D if nt in started else "0"
        started.add(nt)
        a(f"{op} {D}, {vr(A,n)}, {vr(B,n)}, {c}")
    def conv(blk):
        w = WO_ + 16 * (blk & 1)
        if blk < 4:
            mm(MF16, blk + 4, w + 12, KS + 40, 2)
        for i, dl in enumerate((2, 3, 4)):
            if blk + dl <= 7 and dl != 4:
                mm(MF32, blk + dl, w, KS + 4 * i, 4)
                mm(MF32, blk + dl, w + 4, KS + 12 + 4 * i, 4)
        if blk < 4:
            for i, dl in reversed(list(enumerate((4, 5, 6, 7)))):
                if blk + dl <= 7:
                    mm(MF32, blk + dl, w + 8, KS + 24 + 4 * i, 4)
            mm(MF32, blk + 4, w, KS + 8, 4)
            mm(MF32, blk + 4, w + 4, KS + 20, 4)
    gen(0); gen(1)
    a("s_waitcnt lgkmcnt(0)")
    for blk in range(6):
        cvt(blk)
        if blk + 2 < 6:
            gen(blk + 2)
        conv(blk)
    for nt in range(2, 8):
        a(f"ds_write_b128 v{vYW}, {vr(AC2+4*(nt-2),4)} offset:{YB + 1088*nt}")
    DC = 160
    for mt in range(2):
        for i in range(4):
            a(f"ds_read_b128 {vr(DC+16*mt+4*i,4)}, v{vYR} offset:{YB + 128*mt + 32*i}")
    stamp(a, "multi")
    NAR, NBR = 8, 6
    AR, BRr = 40, 72
    def rdA(ka):
        off = (34 - ka) * 32
        reg = vDA
        if off >= 576:
            reg, off = vDA2, off - 576
        r = AR + 4 * (ka % NAR)
        a(f"ds_read2_b32 v[{r}:{r+1}], v{reg} offset0:{off//4} offset1:{off//4+1}")
        a(f"ds_read2_b32 v[{r+2}:{r+3}], v{reg} offset0:{off//4+2} offset1:{off//4+3}")
    def rdB(n):
        x0 = 48 - 16 * n
        fl = x0 // 64; wi = x0 - 64 * fl
        a(f"ds_read_b128 {vr(BRr+4*(n%NBR),4)}, v{vUB} offset:{UB + 144*(9+fl) + 2*wi}")
    PF = 4
    def issue(n):
        c = 0
        if n <= 34: rdA(n); c += 2
        if n <= 36: rdB(n); c += 1
        return c
    cnt = [issue(n) for n in range(PF)]
    for n in range(37):
        cnt.append(issue(n + PF))
        a(f"s_waitcnt lgkmcnt({sum(cnt[n+1:n+PF+1])})")
        B = vr(BRr + 4 * (n % NBR), 4)
        if n <= 34:
            a(f"{M32} {vr(DC+16,16)}, {vr(AR+4*(n%NAR),4)}, {B}, {vr(DC+16,16)}")
        if n >= 2:
            a(f"{M32} {vr(DC,16)}, {vr(AR+4*((n-2)%NAR),4)}, {B}, {vr(DC,16)}")
    stamp(a, "dense")
    a(f"""
    s_lshl_b32 s{t[0]}, s{s_w}, 6
    v_lshrrev_b32 v2, 5, v1
    v_lshlrev_b32 v2, 3, v2
    v_sub_u32 v2, v{vUB}, v2
    v_add_u32 v2, s{t[0]}, v2
    v_bfe_u32 v3, v1, 2, 2
    v_mul_u32_u24 v3, {REG+64}, v3
    v_lshrrev_b32 v4, 4, v1
    v_lshl_add_u32 v3, v4, 5, v3
    v_and_b32 v4, 3, v1
    v_lshl_add_u32 v3, v4, 3, v3
    s_mul_i32 s{t[1]}, s{s_w}, 1152
    s_add_u32 s{t[1]}, s{t[1]}, {YB}
    v_add_u32 v3, s{t[1]}, v3
    s_lshl_b32 s{t[2]}, s{s_w}, 9
    v_add_u32 v4, s{t[2]}, v1
    v_mul_u32_u24 v4, 2560, v4
    s_and_b32 s{t[3]}, s{s_d}, 0xfffffffc
    s_lshl_b32 s{t[3]}, s{t[3]}, 1
    """)
    for mt in range(2):
        for i in range(4):
            k = DC + 16 * mt + 4 * i; p = 40 + 2 * (4 * mt + i)
            a(f"v_cvt_pk_bf16_f32 v{p}, v{k}, v{k+1}")
            a(f"v_cvt_pk_bf16_f32 v{p+1}, v{k+2}, v{k+3}")
            a(f"ds_write_b64 v2, v[{p}:{p+1}] offset:{YB + 64*mt + 16*i}")
    a("s_waitcnt lgkmcnt(0)\ns_barrier")
    for i in range(8):
        a(f"{TR} v[{60+2*i}:{61+2*i}], v3 offset:{144*i}")
    for i in range(8):
        a(f"s_waitcnt lgkmcnt({7-i})")
        a(f"buffer_store_dwordx2 v[{60+2*i}:{61+2*i}], v4, {S(sO)}, s{t[3]} offen")
        if i < 7: a(f"s_add_u32 s{t[3]}, s{t[3]}, {64*2560}")
    if genb.PROF[0]: a("s_waitcnt vmcnt(0)")
    prof_end(a, "A")
    a("L_A_end:\ns_endpgm")
```

```python
from dsl import *

WS_KV = 0
WS_O = 1 << 20
WS_CLR_BYTES = WS_O + 128 * 20 * 1024
WS_UT = 4 << 20
WS_DBG = 8 << 20
WS_SIZE = 64 << 20
NB, NA = 256, 160
OOB = 0x40000000

WSLOT = {0: 20480, 1: 0, 2: 10240}
XBASE = 30720
XSLOT = {0: 0, 1: 32768, 2: 16384}
WPHI = 79872
PKB, VB = 20480, 40960
QA, QB, QD, QC = 0, 10240, 53248, 63488
ZERO, KVB = 73728, 74752

sX, sW, sWS, sO, sWO, sPH, sD = 8, 12, 16, 20, 24, 28, 32
S = lambda b: f"s[{b}:{b+3}]"
s_hp, s_rb, s_kc, s_w = 36, 37, 38, 39
s_t0, s_t1, s_t2, s_t3, s_t4, s_t5 = 40, 41, 42, 43, 44, 45
s_xm0, s_wm0, s_wm2 = 46, 47, 48
s_L, s_spin = 50, 52
s_rot = 53
s_m0a, s_m0b = 54, 56
s_rb2, s_cb = 58, 59
s_ex = 60

MF32 = "v_mfma_f32_16x16x32_bf16"
MF16 = "v_mfma_f32_16x16x16_bf16"
TR = "ds_read_b64_tr_b16"
SPIN_MAX = 4000

def srd(a, base, size):
    a(f"s_mov_b32 s{base+2}, {size}\ns_mov_b32 s{base+3}, 0x00020000")

def softmax(a, P, E, OUT, T):
    mx, mn, r0, r1 = T[0], T[0] + 1, T[1], T[2]
    a(f"v_max3_f32 v{mx}, v{P}, v{P+1}, v{P+2}")
    a(f"v_min3_f32 v{mn}, v{P}, v{P+1}, v{P+2}")
    a(f"v_max3_f32 v{r0}, v{P+3}, v{P+4}, v{P+5}")
    a(f"v_min3_f32 v{r1}, v{P+3}, v{P+4}, v{P+5}")
    for i in range(6, 18, 4):
        a(f"v_max3_f32 v{mx}, v{mx}, v{P+i}, v{P+i+1}")
        a(f"v_min3_f32 v{mn}, v{mn}, v{P+i}, v{P+i+1}")
        a(f"v_max3_f32 v{r0}, v{r0}, v{P+i+2}, v{P+i+3}")
        a(f"v_min3_f32 v{r1}, v{r1}, v{P+i+2}, v{P+i+3}")
    a(f"v_max3_f32 v{mx}, v{mx}, v{P+18}, v{P+19}")
    a(f"v_min3_f32 v{mn}, v{mn}, v{P+18}, v{P+19}")
    a(f"v_max_f32 v{mx}, v{mx}, v{r0}")
    a(f"v_min_f32 v{mn}, v{mn}, v{r1}")
    a(f"v_pk_mul_f32 v[{mx}:{mn}], v[{mx}:{mn}], s[{s_L}:{s_L+1}]")
    for i in range(0, 20, 2):
        a(f"v_pk_fma_f32 v[{E+i}:{E+i+1}], v[{P+i}:{P+i+1}], s[{s_L}:{s_L+1}], v[{mx}:{mn}] op_sel:[0,0,0] op_sel_hi:[1,1,0] neg_lo:[0,0,1] neg_hi:[0,0,1]")
        a(f"v_pk_fma_f32 v[{E+20+i}:{E+21+i}], v[{P+i}:{P+i+1}], s[{s_L}:{s_L+1}], v[{mx}:{mn}] op_sel:[0,0,1] op_sel_hi:[1,1,1] neg_lo:[1,0,0] neg_hi:[1,0,0]")
    for i in range(40):
        a(f"v_exp_f32 v{E+i}, v{E+i}")
    a(f"v_pk_add_f32 v[{r0}:{r0+1}], v[{E}:{E+1}], v[{E+2}:{E+3}]")
    a(f"v_pk_add_f32 v[{r1}:{r1+1}], v[{E+20}:{E+21}], v[{E+22}:{E+23}]")
    for i in range(4, 20, 2):
        a(f"v_pk_add_f32 v[{r0}:{r0+1}], v[{r0}:{r0+1}], v[{E+i}:{E+i+1}]")
        a(f"v_pk_add_f32 v[{r1}:{r1+1}], v[{r1}:{r1+1}], v[{E+20+i}:{E+21+i}]")
    a(f"v_add_f32 v{r0}, v{r0}, v{r0+1}")
    a(f"v_add_f32 v{r1}, v{r1}, v{r1+1}")
    a(f"v_rcp_f32 v{r0}, v{r0}")
    a(f"v_rcp_f32 v{r1}, v{r1}")
    for i in range(0, 20, 2):
        a(f"v_pk_mul_f32 v[{E+i}:{E+i+1}], v[{E+i}:{E+i+1}], v[{r0}:{r0+1}] op_sel:[0,0] op_sel_hi:[1,0]")
        a(f"v_pk_mul_f32 v[{E+20+i}:{E+21+i}], v[{E+20+i}:{E+21+i}], v[{r1}:{r1+1}] op_sel:[0,0] op_sel_hi:[1,0]")
    for i in range(20):
        a(f"v_cvt_pk_bf16_f32 v{OUT+i}, v{E+2*i}, v{E+2*i+1}")

def dump(a, regs, vt, slot=0):
    a(f"s_lshl_b32 s63, s2, 16\ns_add_u32 s63, s63, {WS_DBG}\nv_lshlrev_b32 v{vt}, 2, v0")
    for i, r in enumerate(regs):
        a(f"buffer_store_dword v{r}, v{vt}, {S(sWS)}, s63 offen\ns_add_u32 s63, s63, 1024")
    a("s_waitcnt vmcnt(0)")

PROF = [False, 0, []]
def stamp(a, name):
    if not PROF[0]:
        return
    i = PROF[1]; PROF[1] += 1; PROF[2].append(name)
    assert i < 18
    a(f"s_memtime s[{64+2*i}:{65+2*i}]")
def prof_begin(a):
    PROF[1] = 0; PROF[2].clear()
    if PROF[0]:
        a("s_memrealtime s[100:101]")
    stamp(a, "start")
def prof_end(a, tag):
    if not PROF[0]:
        return
    stamp(a, "end")
    a(f"""
    s_waitcnt lgkmcnt(0) vmcnt(0)
    v_lshrrev_b32 v1, 6, v0
    s_lshl_b32 s3, s2, 2
    v_add_u32 v1, s3, v1
    v_lshlrev_b32 v1, 7, v1
    s_mov_b32 s3, {WS_DBG}
    v_mov_b32 v2, s100
    buffer_store_dword v2, v1, {S(sWS)}, s3 offen offset:124
    s_getreg_b32 s4, hwreg(HW_REG_HW_ID)
    s_getreg_b32 s5, hwreg(HW_REG_XCC_ID)
    v_mov_b32 v2, s4
    buffer_store_dword v2, v1, {S(sWS)}, s3 offen offset:120
    v_mov_b32 v2, s5
    buffer_store_dword v2, v1, {S(sWS)}, s3 offen offset:116
    v_mov_b32 v2, s6
    buffer_store_dword v2, v1, {S(sWS)}, s3 offen offset:112
    v_mov_b32 v2, s7
    buffer_store_dword v2, v1, {S(sWS)}, s3 offen offset:108
    """)
    for i in range(PROF[1]):
        a(f"v_mov_b32 v2, s{64+2*i}\nbuffer_store_dword v2, v1, {S(sWS)}, s3 offen offset:{4*i}")
    print("PROF", tag, PROF[2])

def gen_b(a, dbg=None):
    vXA0, vXA1, vWA0, vWA1, vWA2, vXR0, vXR1, vWR = 1, 2, 3, 4, 5, 6, 7, 8
    vQA0, vQA1, vQA2 = 9, 10, 11
    t0, t1, t2, t3 = 12, 13, 14, 15
    ACC, WF, XF = 16, 56, 96
    a("L_B:")
    prof_begin(a)
    a(f"""
    s_load_dwordx2 s[{sX}:{sX+1}], s[0:1], 72
    s_load_dwordx2 s[{sW}:{sW+1}], s[0:1], 80
    s_load_dwordx2 s[{sPH}:{sPH+1}], s[0:1], 88
    s_load_dwordx2 s[{sWO}:{sWO+1}], s[0:1], 96
    s_load_dwordx2 s[{sO}:{sO+1}], s[0:1], 104
    s_load_dwordx2 s[{sD}:{sD+1}], s[0:1], 112
    s_load_dwordx2 s[{sWS}:{sWS+1}], s[0:1], 120
    v_lshrrev_b32 v{t0}, 6, v0
    v_readfirstlane_b32 s{s_w}, v{t0}
    s_and_b32 s{s_t0}, s2, 7
    s_lshr_b32 s{s_t1}, s2, 3
    s_and_b32 s{s_hp}, s{s_t0}, 1
    s_lshl_b32 s{s_hp}, s{s_hp}, 3
    s_and_b32 s{s_cb}, s{s_t1}, 7
    s_add_u32 s{s_hp}, s{s_hp}, s{s_cb}
    s_lshr_b32 s{s_rb}, s{s_t0}, 1
    s_lshl_b32 s{s_rb}, s{s_rb}, 2
    s_lshr_b32 s{s_t2}, s{s_t1}, 3
    s_add_u32 s{s_rb}, s{s_rb}, s{s_t2}
    s_lshl_b32 s{s_rb2}, s{s_t0}, 2
    s_add_u32 s{s_rb2}, s{s_rb2}, s{s_t2}
    s_mul_i32 s{s_kc}, s{s_rb}, 3
    s_add_u32 s{s_kc}, s{s_kc}, s{s_hp}
    s_mul_i32 s{s_t0}, s{s_kc}, 6554
    s_lshr_b32 s{s_t0}, s{s_t0}, 16
    s_mul_i32 s{s_t0}, s{s_t0}, 10
    s_sub_u32 s{s_kc}, s{s_kc}, s{s_t0}
    s_mov_b32 s{s_rot}, s{s_kc}
    """)
    srd(a, sX, 2621440); srd(a, sW, 2457600); srd(a, sWS, WS_SIZE); srd(a, sO, 5242880)
    srd(a, sWO, 819200); srd(a, sPH, 25600); srd(a, sD, 256)
    a(f"""
    v_and_b32 v{t1}, 63, v0
    v_lshrrev_b32 v{t2}, 3, v{t1}
    s_lshl_b32 s{s_t0}, s{s_rb}, 7
    s_lshl_b32 s{s_t1}, s{s_w}, 5
    s_add_u32 s{s_t0}, s{s_t0}, s{s_t1}
    v_add_u32 v{t2}, s{s_t0}, v{t2}
    v_mul_u32_u24 v{t2}, 1280, v{t2}
    v_and_b32 v{t3}, 7, v0
    v_lshrrev_b32 v{t0}, 4, v{t1}
    v_xor_b32 v{t3}, v{t3}, v{t0}
    v_lshl_add_u32 v{vXA0}, v{t3}, 4, v{t2}
    v_xor_b32 v{t3}, 4, v{t3}
    v_lshl_add_u32 v{vXA1}, v{t3}, 4, v{t2}
    v_add_u32 v{vXA1}, 10240, v{vXA1}
    s_lshl_b32 s{s_xm0}, s{s_w}, 12
    s_add_u32 s{s_xm0}, s{s_xm0}, {XBASE}
    s_lshl_b32 s{s_wm0}, s{s_w}, 10
    s_lshl_b32 s{s_wm2}, s{s_w}, 9
    s_add_u32 s{s_wm2}, s{s_wm2}, 8192
    s_mul_i32 s{s_t2}, s{s_hp}, 80
    s_add_u32 s{s_t3}, s{s_t2}, 1280
    """)
    def wunit(dst, j):
        if j < 2:
            a(f"v_add_u32 v{t0}, {256*j}, v0")
        else:
            a(f"v_add_u32 v{t0}, s{s_t1}, v{t1}\nv_add_u32 v{t0}, 512, v{t0}")
        a(f"""
        v_mul_u32_u24 v{t2}, 6554, v{t0}
        v_lshrrev_b32 v{t2}, 16, v{t2}
        v_mul_u32_u24 v{t3}, 10, v{t2}
        v_sub_u32 v{t0}, v{t0}, v{t3}
        v_lshrrev_b32 v{t3}, 1, v{t2}
        v_xor_b32 v{t3}, v{t3}, v{t2}
        v_and_b32 v{t3}, 4, v{t3}
        v_mul_u32_u24 v{t3}, 3, v{t3}
        v_xor_b32 v{t2}, v{t2}, v{t3}
        v_mul_u32_u24 v{t2}, 3840, v{t2}
        v_lshl_add_u32 v{t2}, v{t0}, 4, v{t2}
        v_cmp_lt_u32 vcc, 4, v{t0}
        v_mov_b32 v{t3}, 1200
        v_cndmask_b32 v{t3}, 0, v{t3}, vcc
        v_add3_u32 v{dst}, v{t2}, v{t3}, s{s_t3}
        """)
    wunit(vWA0, 0); wunit(vWA1, 1); wunit(vWA2, 2)
    a("s_waitcnt lgkmcnt(0)")

    def dma_chunk(slot):
        xs, wsl = XSLOT[slot], WSLOT[slot]
        a(f"""
        s_lshl_b32 s{s_t0}, s{s_kc}, 7
        s_mul_i32 s{s_t2}, s{s_kc}, 245760
        s_add_u32 s{s_t1}, s{s_t0}, 20480
        s_add_u32 m0, s{s_wm0}, {wsl}
        buffer_load_dwordx4 v{vWA0}, {S(sW)}, s{s_t2} offen lds
        s_add_u32 m0, s{s_wm0}, {wsl+4096}
        buffer_load_dwordx4 v{vWA1}, {S(sW)}, s{s_t2} offen lds
        s_add_u32 m0, s{s_wm2}, {wsl}
        s_mov_b64 exec, 0xffffffff
        buffer_load_dwordx4 v{vWA2}, {S(sW)}, s{s_t2} offen lds
        s_mov_b64 exec, -1
        s_add_u32 m0, s{s_xm0}, {xs}
        buffer_load_dwordx4 v{vXA0}, {S(sX)}, s{s_t0} offen lds
        s_add_u32 m0, s{s_xm0}, {xs+1024}
        buffer_load_dwordx4 v{vXA1}, {S(sX)}, s{s_t0} offen lds
        s_add_u32 m0, s{s_xm0}, {xs+2048}
        buffer_load_dwordx4 v{vXA0}, {S(sX)}, s{s_t1} offen lds
        s_add_u32 m0, s{s_xm0}, {xs+3072}
        buffer_load_dwordx4 v{vXA1}, {S(sX)}, s{s_t1} offen lds
        s_add_u32 s{s_kc}, s{s_kc}, 1
        s_cmp_eq_u32 s{s_kc}, 10
        s_cselect_b32 s{s_kc}, 0, s{s_kc}
        """)
    stamp(a, "args")
    dma_chunk(0)
    dma_chunk(1)
    a(f"""
    s_and_b32 s{s_t0}, s{s_w}, 1
    s_mul_i32 s{s_t1}, s{s_t0}, 960
    s_add_u32 m0, s{s_t1}, {WPHI}
    s_lshl_b32 s{s_t2}, s{s_hp}, 1
    s_add_u32 s{s_t2}, s{s_t2}, s{s_t0}
    s_mul_i32 s{s_t2}, s{s_t2}, 800
    v_lshlrev_b32 v{t0}, 4, v{t1}
    s_mov_b32 exec_hi, 0x3ffff
    buffer_load_dwordx4 v{t0}, {S(sPH)}, s{s_t2} offen lds
    s_mov_b64 exec, -1
    """)
    NEXTRA = 1
    a(f"""
    v_mov_b32 v{t2}, 0
    v_min_u32 v{t3}, 39, v{t1}
    v_lshlrev_b32 v{t3}, 2, v{t3}
    v_add_u32 v{t3}, {WPHI+800}, v{t3}
    ds_write_b32 v{t3}, v{t2}
    ds_write_b32 v{t3}, v{t2} offset:960
    """)
    a(f"""
    v_and_b32 v{t0}, 15, v0
    v_bfe_u32 v{t2}, v0, 4, 2
    v_lshrrev_b32 v{t3}, 1, v{t0}
    v_xor_b32 v{t3}, v{t3}, v{t2}
    v_lshlrev_b32 v{t3}, 4, v{t3}
    v_lshl_add_u32 v{t3}, v{t0}, 7, v{t3}
    v_add_u32 v{vXR0}, s{s_xm0}, v{t3}
    v_xor_b32 v{vXR1}, 64, v{vXR0}
    v_lshrrev_b32 v{t3}, 1, v{t2}
    v_lshlrev_b32 v{t3}, 4, v{t3}
    v_and_b32 v{t2}, 1, v{t2}
    v_lshl_add_u32 v{t3}, v{t2}, 2, v{t3}
    v_lshrrev_b32 v{t2}, 2, v{t0}
    v_add_u32 v{t3}, v{t3}, v{t2}
    v_mul_u32_u24 v{t3}, 160, v{t3}
    v_and_b32 v{t2}, 3, v0
    v_mul_u32_u24 v{t2}, 40, v{t2}
    v_add_u32 v{vWR}, v{t3}, v{t2}
    s_mov_b32 s{s_L}, 0x3fb8aa3b
    s_mov_b32 s{s_L+1}, 0x3fb8aa3b
    """)
    a(f"s_mul_i32 s{s_t4}, s{s_hp}, 80\ns_lshl_b32 s{s_t1}, s{s_w}, 5")
    for j, dst in enumerate((vQA0, vQA1, vQA2)):
        if j < 2:
            a(f"v_add_u32 v{t0}, {256*j}, v0")
        else:
            a(f"v_add_u32 v{t0}, s{s_t1}, v{t1}\nv_add_u32 v{t0}, 512, v{t0}")
        a(f"""
        v_mul_u32_u24 v{t2}, 13108, v{t0}
        v_lshrrev_b32 v{t2}, 16, v{t2}
        v_mul_u32_u24 v{t3}, 5, v{t2}
        v_sub_u32 v{t0}, v{t0}, v{t3}
        v_and_b32 v{t2}, 63, v{t2}
        v_mul_u32_u24 v{t2}, 3840, v{t2}
        v_lshl_add_u32 v{t2}, v{t0}, 4, v{t2}
        v_add_u32 v{dst}, s{s_t4}, v{t2}
        """)

    def dma_q(idx, dst):
        a(f"""
        s_add_u32 s{s_t0}, s{s_rot}, {2*idx}
        s_sub_u32 s{s_t1}, s{s_t0}, 10
        s_cmp_ge_u32 s{s_t0}, 10
        s_cselect_b32 s{s_t0}, s{s_t1}, s{s_t0}
        s_add_u32 s{s_t1}, s{s_t0}, 1
        s_cmp_eq_u32 s{s_t1}, 10
        s_cselect_b32 s{s_t1}, 0, s{s_t1}
        s_mul_i32 s{s_t0}, s{s_t0}, 245760
        s_mul_i32 s{s_t1}, s{s_t1}, 245760
        s_cmp_eq_u32 s{s_w}, 0
        s_cselect_b32 s{s_t2}, s{s_t0}, s{s_t1}
        s_add_u32 m0, s{s_wm0}, {dst}
        buffer_load_dwordx4 v{vQA0}, {S(sW)}, s{s_t0} offen lds
        s_add_u32 m0, s{s_wm0}, {dst+4096}
        buffer_load_dwordx4 v{vQA1}, {S(sW)}, s{s_t2} offen lds
        s_add_u32 m0, s{s_wm2}, {dst}
        s_mov_b64 exec, 0xffffffff
        buffer_load_dwordx4 v{vQA2}, {S(sW)}, s{s_t1} offen lds
        s_mov_b64 exec, -1
        """)

    xf = lambda c, ks, st: XF + ((c * 2 + ks) * 2 + st) * 4
    acc = lambda tau, st: ACC + (tau * 2 + st) * 4
    for i in range(10):
        a.comment(f"---- kv main loop iteration {i}")
        n = {0: 7 + NEXTRA, 1: 7 + NEXTRA, 8: 8, 9: 6}.get(i, 7)
        a(f"s_waitcnt vmcnt({n})\ns_barrier")
        if i in (0, 3, 6, 9): stamp(a, f"it{i}")
        if i < 8:
            dma_chunk((i + 2) % 3)
        elif i == 8:
            dma_q(0, QA); dma_q(2, QC)
        else:
            dma_q(1, QB); dma_q(3, QD)
        if i == 7:
            a(f"""
            v_lshlrev_b32 v{t0}, 2, v0
            v_cmp_gt_u32 vcc, 40, v0
            v_mov_b32 v{t1}, {OOB}
            v_cndmask_b32 v{t0}, v{t1}, v{t0}, vcc
            buffer_load_dword v{t1}, v{t0}, {S(sD)}, 0 offen sc1
            """)
        wsl, xs = WSLOT[i % 3], XSLOT[i % 3]
        for ks in range(2):
            for tau in range(5):
                for hf in range(2):
                    r = WF + (ks * 5 + tau) * 4 + hf * 2
                    a(f"{TR} v[{r}:{r+1}], v{vWR} offset:{wsl + ks*5120 + hf*1280 + 8*tau}")
            for st in range(2):
                a(f"ds_read_b128 {vr(xf(i,ks,st),4)}, v{vXR0 if ks == 0 else vXR1} offset:{xs + st*2048}")
        if i == 8:
            a("v_mov_b32 v2, 0\nv_mov_b32 v3, 0\nv_mov_b32 v4, 0\nv_mov_b32 v5, 0")
            a(f"v_and_b32 v1, 63, v0\nv_lshlrev_b32 v1, 4, v1\nv_add_u32 v1, {ZERO}, v1")
            a("ds_write_b128 v1, v[2:5]")
        if i == 9:
            a(f"""
            s_mov_b32 s{s_t5}, 0x01010101
            v_cmp_ne_u32 s[{s_m0a}:{s_m0a+1}], s{s_t5}, v{t1}
            """)
        for ks in range(2):
            a(f"s_waitcnt lgkmcnt({(12 + (1 if i == 8 else 0)) if ks == 0 else 0})")
            if i == 9 and ks == 1:
                a("s_barrier")
            for tau in range(5):
                for st in range(2):
                    c = "0" if (i == 0 and ks == 0) else vr(acc(tau, st), 4)
                    a(f"{MF32} {vr(acc(tau,st),4)}, {vr(WF+(ks*5+tau)*4,4)}, {vr(xf(i,ks,st),4)}, {c}")
    stamp(a, "gemm")
    if dbg == "acc": dump(a, range(16, 56), 12)
    KS, VS, PP = 56, 66, 76
    vPH, vA, vB_, vKA, vKB, vST0, vST1 = 1, 3, 4, 5, 6, 7, 8
    a(f"""
    v_bfe_u32 v{t2}, v0, 4, 2
    v_and_b32 v{t3}, 3, v0
    v_cmp_eq_u32 vcc, v{t2}, v{t3}
    v_and_b32 v{t0}, 1, v{t2}
    v_mul_u32_u24 v{vPH}, 960, v{t0}
    v_bfe_u32 v{t3}, v0, 2, 2
    v_mul_u32_u24 v{t3}, 40, v{t3}
    v_add_u32 v{vPH}, v{vPH}, v{t3}
    v_add_u32 v{vPH}, {WPHI}, v{vPH}
    v_mov_b32 v{t3}, {ZERO}
    v_cndmask_b32 v{vPH}, v{t3}, v{vPH}, vcc
    v_lshrrev_b32 v{t2}, 1, v{t2}
    v_lshlrev_b32 v{t2}, 4, v{t2}
    v_and_b32 v{t3}, 15, v0
    v_add_u32 v{t2}, v{t2}, v{t3}
    s_lshl_b32 s{s_t1}, s{s_w}, 5
    v_add_u32 v{t2}, s{s_t1}, v{t2}
    v_mul_u32_u24 v{vA}, 96, v{t2}
    v_mul_u32_u24 v{t3}, 40, v{t0}
    v_add_u32 v{vA}, v{vA}, v{t3}
    v_mul_u32_u24 v{vB_}, 160, v{t2}
    v_lshl_add_u32 v{vB_}, v{t3}, 1, v{vB_}
    """)
    for st, dst in ((0, KS), (1, VS)):
        for tau in range(5):
            for i in range(2):
                a(f"v_cvt_pk_bf16_f32 v{dst+2*tau+i}, v{acc(tau,st)+2*i}, v{acc(tau,st)+2*i+1}")
    aphi = lambda tau: (16 + 10 * tau) if tau < 4 else VS
    def load_aphi(tau):
        for j in range(5):
            a(f"{TR} v[{aphi(tau)+2*j}:{aphi(tau)+2*j+1}], v{vPH} offset:{160*j + 8*tau}")
    for tau in range(4):
        load_aphi(tau)
    for n in range(10):
        a(f"v_permlane32_swap_b32 v{KS+n}, v{VS+n}")
    for j in range(5):
        a(f"ds_write_b64 v{vA}, v[{VS+2*j}:{VS+2*j+1}] offset:{VB + 8*j}")
    load_aphi(4)
    a("s_waitcnt lgkmcnt(10)")
    for tau in range(5):
        if tau == 4:
            a("s_waitcnt lgkmcnt(0)")
        A = aphi(tau); D = vr(PP + 4 * tau, 4)
        a(f"{MF16} {D}, {vr(A+8,2)}, {vr(KS+8,2)}, 0")
    for kap in range(2):
        for tau in range(5):
            A = aphi(tau); D = vr(PP + 4 * tau, 4)
            a(f"{MF32} {D}, {vr(A+4*kap,4)}, {vr(KS+4*kap,4)}, {D}")
    a(f"""
    s_lshr_b32 s{s_t0}, s{s_w}, 1
    s_and_b32 s{s_t1}, s{s_w}, 1
    s_mul_i32 s{s_t2}, s{s_t0}, 40
    s_lshl_b32 s{s_t3}, s{s_t1}, 5
    s_add_u32 s{s_t3}, s{s_t3}, s{s_t2}
    s_lshl_b32 s{s_t2}, s{s_t2}, 1
    v_bfe_u32 v{t0}, v0, 2, 4
    v_and_b32 v{t1}, 3, v0
    v_lshlrev_b32 v{t1}, 3, v{t1}
    v_mul_u32_u24 v{vKA}, 96, v{t0}
    v_add3_u32 v{vKA}, v{vKA}, v{t1}, s{s_t3}
    v_mul_u32_u24 v{vKB}, 160, v{t0}
    v_add3_u32 v{vKB}, v{vKB}, v{t1}, s{s_t2}
    s_cmp_eq_u32 s{s_t1}, 1
    s_cselect_b32 s{s_m0b}, 0xfff0fff0, 0
    s_mov_b32 s{s_m0b+1}, s{s_m0b}
    s_lshl_b32 s{s_t1}, s{s_t1}, 3
    s_add_u32 s{s_t1}, s{s_t1}, s{s_t0}
    s_mul_i32 s{s_t1}, s{s_t1}, 320
    v_bfe_u32 v{t0}, v0, 4, 2
    v_mul_u32_u24 v{t0}, 640, v{t0}
    v_and_b32 v{t1}, 15, v0
    v_lshl_add_u32 v{t0}, v{t1}, 3, v{t0}
    v_add_u32 v{t0}, s{s_t1}, v{t0}
    v_mov_b32 v{t2}, {OOB}
    v_cmp_gt_u32 vcc, 3840, v{t0}
    v_cndmask_b32 v{vST0}, v{t2}, v{t0}, vcc
    v_cmp_gt_u32 vcc, 8, v{t1}
    v_cndmask_b32 v{vST1}, v{t2}, v{vST0}, vcc
    """)
    if dbg == "pk": dump(a, range(PP, PP + 20), 12)
    softmax(a, PP, 16, 56, (12, 14, 2))
    if dbg == "phik": dump(a, range(56, 76), 12)
    for j in range(5):
        a(f"ds_write_b128 v{vB_}, {vr(56+4*j,4)} offset:{PKB + 16*j}")
    a(f"""
    s_cmp_lg_u32 s{s_w}, 0
    s_cbranch_scc1 L_B_flags_ok
    s_and_b32 s{s_m0a+1}, s{s_m0a+1}, 0xff
    s_cmp_eq_u64 s[{s_m0a}:{s_m0a+1}], 0
    s_cbranch_scc1 L_B_flags_ok
    s_mov_b32 s{s_spin}, 0
    v_min_u32 v{t0}, 39, v0
    v_lshlrev_b32 v{t0}, 2, v{t0}
    L_B_flags_poll:
    buffer_load_dword v{t1}, v{t0}, {S(sD)}, 0 offen sc1
    s_add_u32 s{s_spin}, s{s_spin}, 1
    s_waitcnt vmcnt(0)
    v_cmp_ne_u32 vcc, s{s_t5}, v{t1}
    s_cmp_ge_u32 s{s_spin}, {SPIN_MAX}
    s_cbranch_scc1 L_B_flags_ok
    s_cbranch_vccnz L_B_flags_poll
    L_B_flags_ok:
    s_waitcnt lgkmcnt(0)
    s_barrier
    """)
    stamp(a, "smk")
    KA, KB, KC = 76, 16, 64
    for ks in range(4):
        for hf in range(2):
            r = KA + ks * 4 + hf * 2
            a(f"{TR} v[{r}:{r+1}], v{vKA} offset:{VB + ks*3072 + hf*1536}")
    for ks in range(4):
        for ph in range(3):
            for hf in range(2):
                r = KB + (ks * 3 + ph) * 4 + hf * 2
                a(f"{TR} v[{r}:{r+1}], v{vKB} offset:{PKB + ks*5120 + hf*2560 + 32*ph}")
        if ks == 0:
            a(f"v_mov_b32 v{t0}, 0x3f803f80\ns_waitcnt lgkmcnt(6)")
            for r in range(16):
                a(f"v_cndmask_b32 v{KA+r}, v{KA+r}, v{t0}, s[{s_m0b}:{s_m0b+1}]")
    a(f"""
    s_lshl_b32 s{s_t0}, s{s_hp}, 4
    s_add_u32 s{s_t0}, s{s_t0}, s{s_rb}
    s_lshl_b32 s{s_t0}, s{s_t0}, 12
    """)
    for ks in range(4):
        a(f"s_waitcnt lgkmcnt({min(15, 6*(3-ks))})")
        for ph in range(3):
            D = vr(KC + 4 * ph, 4)
            a(f"{MF32} {D}, {vr(KA+4*ks,4)}, {vr(KB+(ks*3+ph)*4,4)}, {'0' if ks == 0 else D}")
    for ph in range(3):
        a(f"v_cvt_pk_bf16_f32 v{KA+2*ph}, v{KC+4*ph}, v{KC+4*ph+1}")
        a(f"v_cvt_pk_bf16_f32 v{KA+2*ph+1}, v{KC+4*ph+2}, v{KC+4*ph+3}")
        a(f"buffer_store_dwordx2 v[{KA+2*ph}:{KA+2*ph+1}], v{vST0 if ph < 2 else vST1}, {S(sWS)}, s{s_t0} offen offset:{128*ph} sc1")
    stamp(a, "pub1")
    vQR, vQR2, vPQ = 1, 2, 3
    QF, QACC = 16, 64
    a(f"""
    v_bfe_u32 v{t0}, v0, 4, 2
    v_bfe_u32 v{t1}, v0, 2, 2
    v_lshl_add_u32 v{t2}, v{t0}, 3, v{t1}
    v_mul_u32_u24 v{vQR}, 80, v{t2}
    v_bfe_u32 v{t2}, v0, 1, 1
    v_mul_u32_u24 v{t2}, 40, v{t2}
    v_and_b32 v{t3}, 1, v0
    v_mul_u32_u24 v4, 24, v{t3}
    v_add3_u32 v{vQR}, v{vQR}, v{t2}, v4
    v_add_u32 v{vQR2}, {QD}, v{vQR}
    v_lshrrev_b32 v{t2}, 1, v{t0}
    v_cmp_eq_u32 vcc, v{t2}, v{t3}
    v_mul_u32_u24 v{t2}, 960, v{t2}
    v_and_b32 v{t0}, 1, v{t0}
    v_mul_u32_u24 v{t0}, 12, v{t0}
    v_add_u32 v{t0}, v{t0}, v{t1}
    v_mul_u32_u24 v{t0}, 40, v{t0}
    v_add_u32 v{t0}, v{t0}, v{t2}
    v_add_u32 v{t0}, {WPHI}, v{t0}
    v_mov_b32 v{t1}, {ZERO}
    v_cndmask_b32 v{vPQ}, v{t1}, v{t0}, vcc
    s_waitcnt vmcnt(3)
    s_barrier
    """)
    qacc = lambda tau, st: QACC + (tau * 2 + st) * 4
    qloc = {0: (vQR, QA), 1: (vQR, QB), 2: (vQR2, QC - QD), 3: (vQR2, 0), 4: (vQR, QA)}
    def q_read(hc):
        reg, base = qloc[hc // 2]
        for ks in range(2):
            for tau in range(3):
                for hf in range(2):
                    r = QF + (hc & 1) * 24 + (ks * 3 + tau) * 4 + hf * 2
                    a(f"{TR} v[{r}:{r+1}], v{reg} offset:{base + ((hc&1)*2+ks)*2560 + hf*320 + 8*tau}")
    def q_mfma(hc):
        for ks in range(2):
            for tau in range(3):
                for st in range(2):
                    D = vr(qacc(tau, st), 4)
                    a(f"{MF32} {D}, {vr(QF+(hc&1)*24+(ks*3+tau)*4,4)}, {vr(xf(hc,ks,st),4)}, {'0' if (hc == 0 and ks == 0) else D}")
    AQ = 96
    q_read(0); q_read(1)
    a("s_waitcnt lgkmcnt(12)"); q_mfma(0)
    a("s_waitcnt lgkmcnt(0)\ns_barrier")
    dma_q(4, QA)
    q_read(2); q_mfma(1)
    for hc in range(2, 8):
        if hc < 7:
            q_read(hc + 1)
            a("s_waitcnt lgkmcnt(12)")
        else:
            for tp in range(5):
                for j in range(3):
                    a(f"{TR} v[{AQ+6*tp+2*j}:{AQ+6*tp+2*j+1}], v{vPQ} offset:{160*j + 8*tp}")
            a("s_waitcnt lgkmcnt(15)")
        q_mfma(hc)
    a("s_waitcnt vmcnt(0) lgkmcnt(0)\ns_barrier")
    q_read(8); q_read(9)
    EX = 128
    vEX, vKW = 4, 5
    a(f"""
    v_lshlrev_b32 v{vEX}, 4, v0
    v_cmp_gt_u32 vcc, 240, v0
    v_mov_b32 v{t0}, {OOB}
    v_cndmask_b32 v{vEX}, v{t0}, v{vEX}, vcc
    s_lshl_b32 s{s_t4}, s{s_hp}, 16
    """)
    def ex1_loads():
        a(f"s_mov_b32 s{s_t0}, s{s_t4}")
        for p in range(16):
            a(f"buffer_load_dwordx4 {vr(EX+4*p,4)}, v{vEX}, {S(sWS)}, s{s_t0} offen sc1")
            if p < 15:
                a(f"s_add_u32 s{s_t0}, s{s_t0}, 4096")
    ex1_loads()
    a("s_waitcnt lgkmcnt(12)"); q_mfma(8)
    a("s_waitcnt lgkmcnt(0)\ns_barrier"); q_mfma(9)
    vWO = 6
    a(f"""
    v_and_b32 v{t0}, 63, v0
    v_mul_u32_u24 v{t1}, 6554, v{t0}
    v_lshrrev_b32 v{t1}, 16, v{t1}
    v_mul_u32_u24 v{t2}, 10, v{t1}
    v_sub_u32 v{t0}, v{t0}, v{t2}
    s_mul_i32 s{s_t0}, s{s_w}, 5
    v_add_u32 v{t1}, s{s_t0}, v{t1}
    v_mul_u32_u24 v{t1}, 1280, v{t1}
    v_lshl_add_u32 v{t1}, v{t0}, 4, v{t1}
    s_mul_i32 s{s_t0}, s{s_cb}, 160
    v_add_u32 v{vWO}, s{s_t0}, v{t1}
    s_mul_i32 s{s_wm0}, s{s_w}, 800
    """)
    def dma_wo(unit, slot):
        a("s_mov_b32 exec_hi, 0x3ffff")
        for rd in range(8):
            a(f"s_add_u32 m0, s{s_wm0}, {slot*25600 + rd*3200}")
            a(f"s_mov_b32 s{s_t0}, {(unit*160 + rd*20)*1280}")
            a(f"buffer_load_dwordx4 v{vWO}, {S(sWO)}, s{s_t0} offen lds")
        a("s_mov_b64 exec, -1")
    for u in range(3):
        dma_wo(u, u)
    stamp(a, "qgemm")
    KVB2, ZERO2 = 76800, 80640
    QP = 16
    for st in range(2):
        for tau in range(3):
            for i in range(2):
                a(f"v_cvt_pk_bf16_f32 v{QP+6*st+2*tau+i}, v{qacc(tau,st)+2*i}, v{qacc(tau,st)+2*i+1}")
    P0, P1 = 192, 212
    for st, PB in ((0, P0), (1, P1)):
        for tp in range(5):
            a(f"{MF16} {vr(PB+4*tp,4)}, {vr(AQ+6*tp+4,2)}, {vr(QP+6*st+4,2)}, 0")
    for st, PB in ((0, P0), (1, P1)):
        for tp in range(5):
            D = vr(PB + 4 * tp, 4)
            a(f"{MF32} {D}, {vr(AQ+6*tp,4)}, {vr(QP+6*st,4)}, {D}")
    vA2, vOS0, vOS1 = 7, 8, 9
    a(f"""
    v_mov_b32 v28, 0
    v_mov_b32 v29, 0
    v_mov_b32 v30, 0
    v_mov_b32 v31, 0
    v_and_b32 v{t0}, 63, v0
    v_lshlrev_b32 v{vOS0}, 4, v{t0}
    v_add_u32 v{t0}, {ZERO2}, v{vOS0}
    ds_write_b128 v{t0}, v[28:31]
    v_mul_u32_u24 v{t0}, 3277, v0
    v_lshrrev_b32 v{t0}, 16, v{t0}
    v_mul_u32_u24 v{t1}, 20, v{t0}
    v_sub_u32 v{t1}, v0, v{t1}
    v_mul_u32_u24 v{t1}, 96, v{t1}
    v_and_b32 v{t2}, 1, v{t0}
    v_mul_u32_u24 v{t2}, 1920, v{t2}
    v_lshrrev_b32 v{t0}, 1, v{t0}
    v_lshl_add_u32 v{t0}, v{t0}, 3, v{t1}
    v_add_u32 v{t0}, v{t0}, v{t2}
    v_add_u32 v{vKW}, {KVB2}, v{t0}
    v_bfe_u32 v{t0}, v0, 4, 1
    v_bfe_u32 v{t1}, v0, 1, 1
    v_cmp_eq_u32 vcc, v{t0}, v{t1}
    v_mul_u32_u24 v{t0}, 40, v{t0}
    v_bfe_u32 v{t1}, v0, 5, 1
    v_mul_u32_u24 v{t1}, 20, v{t1}
    v_bfe_u32 v{t2}, v0, 2, 2
    v_add3_u32 v{t0}, v{t0}, v{t1}, v{t2}
    v_mul_u32_u24 v{t0}, 48, v{t0}
    v_and_b32 v{t1}, 1, v0
    v_mul_u32_u24 v{t1}, 24, v{t1}
    v_add_u32 v{t0}, v{t0}, v{t1}
    v_add_u32 v{t0}, {KVB2}, v{t0}
    v_mov_b32 v{t1}, {ZERO2}
    v_cndmask_b32 v{vA2}, v{t1}, v{t0}, vcc
    v_and_b32 v{t0}, 15, v0
    v_lshlrev_b32 v{t0}, 4, v{t0}
    v_bfe_u32 v{t1}, v0, 5, 1
    v_lshl_add_u32 v{t0}, v{t1}, 3, v{t0}
    v_and_b32 v{t1}, 16, v0
    v_cmp_eq_u32 vcc, 0, v{t1}
    v_mov_b32 v{t1}, {OOB}
    v_cndmask_b32 v{vOS1}, v{t1}, v{t0}, vcc
    """)
    for n in range(20):
        a(f"v_permlane32_swap_b32 v{P0+n}, v{P1+n}")
    QO = 232
    softmax(a, P0, 16, QO, (12, 14, 2))
    for n in range(10):
        a(f"v_permlane32_swap_b32 v{QO+n}, v{QO+10+n}")
    stamp(a, "smq")
    SM = 16
    a(f"s_mov_b32 s{s_spin}, 0\ns_mov_b32 s{s_t5}, 0xffff0000")
    a("s_waitcnt vmcnt(24)")
    a("L_B_ex1:")
    for p in range(16):
        for d in range(4):
            src = EX + 4 * p + d
            if p == 0:
                a(f"v_lshlrev_b32 v{SM+2*d}, 16, v{src}")
                a(f"v_and_b32 v{SM+2*d+1}, s{s_t5}, v{src}")
            else:
                a(f"v_lshlrev_b32 v{SM+8+2*d}, 16, v{src}")
                a(f"v_and_b32 v{SM+8+2*d+1}, s{s_t5}, v{src}")
        if p:
            for d in range(4):
                a(f"v_pk_add_f32 v[{SM+2*d}:{SM+2*d+1}], v[{SM+2*d}:{SM+2*d+1}], v[{SM+8+2*d}:{SM+8+2*d+1}]")
    a(f"""
    v_pk_add_f32 v[{SM+8}:{SM+9}], v[{SM}:{SM+1}], v[{SM+2}:{SM+3}]
    v_pk_add_f32 v[{SM+10}:{SM+11}], v[{SM+4}:{SM+5}], v[{SM+6}:{SM+7}]
    v_add_f32 v{SM+8}, v{SM+8}, v{SM+10}
    v_cmp_u_f32 vcc, v{SM+8}, v{SM+8}
    s_add_u32 s{s_spin}, s{s_spin}, 1
    s_cmp_ge_u32 s{s_spin}, {SPIN_MAX}
    s_cbranch_scc1 L_B_ex1_done
    s_cbranch_vccz L_B_ex1_done
    """)
    ex1_loads()
    a("s_waitcnt vmcnt(0)\ns_branch L_B_ex1\nL_B_ex1_done:")
    for d in range(4):
        a(f"v_cvt_pk_bf16_f32 v{SM+8+d}, v{SM+2*d}, v{SM+2*d+1}")
    a(f"""
    v_cmp_gt_u32 vcc, 240, v0
    s_and_saveexec_b64 s[{s_ex}:{s_ex+1}], vcc
    ds_write2_b64 v{vKW}, v[{SM+8}:{SM+9}], v[{SM+10}:{SM+11}] offset1:6
    s_mov_b64 exec, s[{s_ex}:{s_ex+1}]
    s_waitcnt lgkmcnt(0)
    s_barrier
    """)
    stamp(a, "ex1")
    if PROF[0]: a(f"s_mov_b32 s6, s{s_spin}")
    A2, C2, OP = 32, 64, 88
    for tau in range(3):
        for j in range(5):
            a(f"{TR} v[{A2+10*tau+2*j}:{A2+10*tau+2*j+1}], v{vA2} offset:{192*j + 8*tau}")
    a(f"""
    s_lshl_b32 s{s_t0}, s{s_rb}, 3
    s_lshl_b32 s{s_t1}, s{s_w}, 1
    s_add_u32 s{s_t0}, s{s_t0}, s{s_t1}
    s_mul_i32 s{s_t0}, s{s_t0}, 20480
    s_add_u32 s{s_t0}, s{s_t0}, {WS_O}
    s_lshl_b32 s{s_t1}, s{s_hp}, 10
    s_add_u32 s{s_t1}, s{s_t1}, s{s_t0}
    s_lshl_b32 s{s_t2}, s{s_hp}, 8
    s_add_u32 s{s_t2}, s{s_t2}, s{s_t0}
    s_add_u32 s{s_t2}, s{s_t2}, 16384
    s_add_u32 s{s_t3}, s{s_t1}, 20480
    s_add_u32 s{s_t4}, s{s_t2}, 20480
    """)
    a("s_waitcnt lgkmcnt(0)")
    for st in range(2):
        for tau in range(3):
            D = vr(C2 + (st * 3 + tau) * 4, 4); A = A2 + 10 * tau; B = QO + 10 * st
            a(f"{MF16} {D}, {vr(A+8,2)}, {vr(B+8,2)}, 0")
    for st in range(2):
        for kap in range(2):
            for tau in range(3):
                D = vr(C2 + (st * 3 + tau) * 4, 4); A = A2 + 10 * tau; B = QO + 10 * st
                a(f"{MF32} {D}, {vr(A+4*kap,4)}, {vr(B+4*kap,4)}, {D}")
    for st in range(2):
        c = C2 + st * 12
        d0, d1 = (t0, t2) if st == 0 else (2, 10)
        a(f"v_mov_b32 v{d0}, v{c+8}\nv_mov_b32 v{d1}, v{c+8}")
        a(f"v_permlane16_swap_b32 v{d0}, v{d1}")
        a(f"v_add_f32 v{d1}, 0x358637bd, v{d1}\nv_rcp_f32 v{d1}, v{d1}")
        for i in range(0, 12, 2):
            a(f"v_pk_mul_f32 v[{c+i}:{c+i+1}], v[{c+i}:{c+i+1}], v[{d1}:{d1+1}] op_sel:[0,0] op_sel_hi:[1,0]")
        o = 16 + 8 * st
        for i in range(6):
            a(f"v_cvt_pk_bf16_f32 v{o+i}, v{c+2*i}, v{c+2*i+1}")
        a(f"buffer_store_dwordx4 {vr(o,4)}, v{vOS0}, {S(sWS)}, s{s_t1 if st == 0 else s_t3} offen sc1")
        a(f"buffer_store_dwordx2 {vr(o+4,2)}, v{vOS1}, {S(sWS)}, s{s_t2 if st == 0 else s_t4} offen sc1")
    stamp(a, "pub2")
    vWM, vWL, vOUT = 1, 3, 4
    OF, C3, WPRE, WB = 96, 176, 196, 32
    a(f"""
    v_bfe_u32 v{t0}, v0, 5, 1
    v_mul_u32_u24 v{t0}, 20, v{t0}
    v_bfe_u32 v{t1}, v0, 4, 1
    v_mul_u32_u24 v{t1}, 12, v{t1}
    v_bfe_u32 v{t2}, v0, 2, 2
    v_add3_u32 v{t0}, v{t0}, v{t1}, v{t2}
    v_mul_u32_u24 v{t0}, 160, v{t0}
    v_and_b32 v{t3}, 3, v0
    v_mul_u32_u24 v{t3}, 40, v{t3}
    v_add_u32 v{vWM}, v{t0}, v{t3}
    v_bfe_u32 v{t0}, v0, 4, 2
    v_mul_u32_u24 v{t1}, 40, v{t0}
    v_add3_u32 v{t2}, v{t1}, v{t2}, 8
    v_mul_u32_u24 v{t2}, 160, v{t2}
    v_add_u32 v{vWL}, v{t2}, v{t3}
    v_and_b32 v{t2}, 15, v0
    s_lshl_b32 s{s_t0}, s{s_rb2}, 2
    s_add_u32 s{s_t0}, s{s_t0}, s{s_w}
    s_lshl_b32 s{s_t1}, s{s_t0}, 4
    v_add_u32 v{t2}, s{s_t1}, v{t2}
    v_mul_u32_u24 v{t2}, 2560, v{t2}
    s_mul_i32 s{s_t1}, s{s_cb}, 160
    s_add_u32 s{s_t1}, s{s_t1}, 1280
    v_add3_u32 v{vOUT}, v{t2}, v{t1}, s{s_t1}
    s_mul_i32 s{s_t4}, s{s_t0}, 20480
    s_add_u32 s{s_t4}, s{s_t4}, {WS_O}
    v_add_u32 v5, 25600, v{vWM}
    v_add_u32 v7, 25600, v{vWL}
    s_waitcnt vmcnt(4)
    s_barrier
    """)
    steps = []
    for u in range(4):
        steps += [(u, j) for j in range(5)]
    wreg = lambda n: (WB + 20 * (n % 6)) if (n % 6) < 3 else (WPRE + 20 * ((n % 6) - 3))
    def wo_read(n):
        u, j = steps[n]
        slot = u % 3
        for tau in range(5):
            for hf in range(2):
                r = wreg(n) + 4 * tau + 2 * hf
                if j < 4:
                    reg, off = (vWM, slot * 25600) if slot < 1 else (5, (slot - 1) * 25600)
                    off += j * 6400 + hf * 640 + 8 * tau
                else:
                    reg, off = (vWL, slot * 25600) if slot < 1 else (7, (slot - 1) * 25600)
                    off += hf * 3200 + 8 * tau
                a(f"{TR} v[{r}:{r+1}], v{reg} offset:{off}")
    for n in range(5):
        wo_read(n)
    a("s_waitcnt lgkmcnt(0)\ns_barrier")
    dma_wo(3, 0)
    a(f"s_mov_b32 s{s_spin}, 0")
    stamp(a, "wo")
    a("L_B_ex2:")
    a(f"s_mov_b32 s{s_t0}, s{s_t4}")
    for k in range(20):
        a(f"buffer_load_dwordx4 {vr(OF+4*k,4)}, v{vOS0}, {S(sWS)}, s{s_t0} offen offset:{(k%4)*1024} sc1")
        if k % 4 == 3 and k < 19:
            a(f"s_add_u32 s{s_t0}, s{s_t0}, 4096")
    a(f"v_mov_b32 v{t0}, 0")
    for k in range(20):
        a(f"s_waitcnt vmcnt({19-k})")
        a(f"v_max3_u32 v{t0}, v{t0}, v{OF+4*k}, v{OF+4*k+1}")
        a(f"v_max3_u32 v{t0}, v{t0}, v{OF+4*k+2}, v{OF+4*k+3}")
    a(f"""
    v_cmp_eq_u32 vcc, -1, v{t0}
    s_add_u32 s{s_spin}, s{s_spin}, 1
    s_cmp_ge_u32 s{s_spin}, {SPIN_MAX}
    s_cbranch_scc1 L_B_ex2_done
    s_cbranch_vccnz L_B_ex2
    L_B_ex2_done:
    s_barrier
    """)
    stamp(a, "ex2")
    if PROF[0]: a(f"s_mov_b32 s7, s{s_spin}")
    wo_read(5)
    for n in range(20):
        u, j = steps[n]
        k = 4 * u + j if j < 4 else 16 + u
        if n >= 5:
            a(f"s_waitcnt lgkmcnt({10 if n < 19 else 0})")
        for tau in range(5):
            D = vr(C3 + 4 * tau, 4)
            a(f"{MF32} {D}, {vr(wreg(n)+4*tau,4)}, {vr(OF+4*k,4)}, {'0' if n == 0 else D}")
        if n >= 4 and n + 2 < 20:
            wo_read(n + 2)
    for i in range(10):
        a(f"v_cvt_pk_bf16_f32 v{16+i}, v{C3+2*i}, v{C3+2*i+1}")
    a(f"""
    buffer_store_dwordx4 v[16:19], v{vOUT}, {S(sO)}, 0 offen
    buffer_store_dwordx4 v[20:23], v{vOUT}, {S(sO)}, 0 offen offset:16
    buffer_store_dwordx2 v[24:25], v{vOUT}, {S(sO)}, 0 offen offset:32
    """)
    stamp(a, "g2")
    if PROF[0]: a("s_waitcnt vmcnt(0)")
    prof_end(a, "B")
    a("s_endpgm")
```

```python
import sys, importlib
sys.path.insert(0, "gen")
from dsl import *
import genb, gena
NAME = "concat_heads__ssm_conv_s4__linear_kernel_hedgehog__prompt"
def build(opts=None):
    opts = opts or {}
    a = Asm()
    genb.PROF[0] = bool(opts.get('prof'))
    a(f"""
    s_cmp_lt_u32 s2, {genb.NB}
    s_cbranch_scc0 L_A
    """)
    genb.gen_b(a, opts.get('dbg'))
    gena.gen_a(a, opts)
    body = a.render()
    ref = open(f"cdna_kernels/{NAME}.s.ref").read()
    hdr = [l for l in ref.split("\n") if l.startswith(";") and "@launch" not in l]
    out = "\n".join(hdr) + f"\n; @launch grid=({genb.NB+genb.NA},1,1) block=(256,1,1) lds=81920\n"
    out += f'.amdgcn_target "amdgcn-amd-amdhsa--gfx950"\n.text\n.globl {NAME}_kernel\n.p2align 8\n.type {NAME}_kernel,@function\n{NAME}_kernel:\n'
    out += body
    out += f""".section .rodata,"a"
.p2align 6
.amdhsa_kernel {NAME}_kernel
  .amdhsa_next_free_vgpr 256
  .amdhsa_next_free_sgpr 102
  .amdhsa_accum_offset 256
  .amdhsa_group_segment_fixed_size 0
  .amdhsa_kernarg_size 128
  .amdhsa_user_sgpr_count 2
  .amdhsa_user_sgpr_kernarg_segment_ptr 1
  .amdhsa_system_sgpr_workgroup_id_x 1
.end_amdhsa_kernel
"""
    print("nops inserted:", a.nops, "instrs:", sum(1 for i in a.items if not isinstance(i, tuple)))
    return out
if __name__ == "__main__":
    dst = sys.argv[1] if len(sys.argv) > 1 else f"cdna_kernels/{NAME}.s"
    opts = dict(x.split('=') for x in sys.argv[2:])
    open(dst, "w").write(build(opts))
```

```python
from dsl import *
from genb import *
import genb, struct

M32 = "v_mfma_f32_32x32x16_bf16"
REG = 20480
RS = 528
STG = 13312
UB = 0
DOo = 7136
DEo = DOo - 1220
MEo = 8320
MOo = MEo + 960
YB = 10240
CD = 560
WS_YT = 12 << 20
ARR = {"R4": (0, 80), "R8": (64, 80), "R12": (128, 80), "R16": (192, 80), "S8": (256, 128), "S16": (336, 128), "T2": (416, 80)}

class LdsQ:
    def __init__(self, a):
        self.a = a; self.q = []; self.done = 0
    def issue(self, text, tag):
        self.a(text); self.q.append(tag)
    def wait(self, *tags):
        idx = max((i for i, t in enumerate(self.q) if t in tags), default=-1)
        if idx < self.done:
            return
        n = min(15, len(self.q) - 1 - idx)
        self.a(f"s_waitcnt lgkmcnt({n})")
        self.done = len(self.q) - n

def gen_a(a, opts):
    dbg = opts.get("dbg")
    pk_hi = opts.get("pkhi", "1") == "1"; pk_lo = opts.get("pklo", "1") == "1"
    emit = lambda lst: [a(x) for x in lst]
    NEG = {}
    def cmul2(d, x, y, pk):
        if pk:
            for m in (0, 2):
                a(f"v_pk_mul_f32 v[{d+m}:{d+m+1}], v[{x+m}:{x+m+1}], v[{y+m}:{y+m+1}] op_sel:[0,0] op_sel_hi:[1,0]")
            for m in (0, 2):
                a(f"v_pk_fma_f32 v[{d+m}:{d+m+1}], v[{x+m}:{x+m+1}], v[{y+m}:{y+m+1}], v[{d+m}:{d+m+1}] op_sel:[1,1,0] op_sel_hi:[0,1,1] neg_lo:[1,0,0]")
        else:
            for m in (0, 2):
                a(f"v_mul_f32 v{d+m}, v{x+m}, v{y+m}")
                a(f"v_mul_f32 v{d+m+1}, v{x+m+1}, v{y+m}")
            for m in (0, 2):
                if y in NEG:
                    a(f"v_fmac_f32 v{d+m}, v{x+m+1}, v{NEG[y]+m//2}")
                else:
                    a(f"v_fma_f32 v{d+m}, -v{x+m+1}, v{y+m+1}, v{d+m}")
                a(f"v_fmac_f32 v{d+m+1}, v{x+m}, v{y+m+1}")
    sU = 4
    sP = 40
    s_aid, s_cbk, s_j, s_w, s_d, s_reg = 36, 37, 38, 39, 58, 59
    t = [8, 9, 10, 11, 12, 13]
    sM, s_sp, sEX, sYT = 14, 15, 60, 35
    a("L_A:")
    a(f"""
    s_cmp_ge_u32 s2, {NB if opts.get("noA") else NB+NA}
    s_cbranch_scc1 L_A_end
    """)
    prof_begin(a)
    a(f"""
    s_load_dwordx16 s[{sP}:{sP+15}], s[0:1], 0
    s_load_dwordx2 s[{sP+16}:{sP+17}], s[0:1], 64
    s_load_dwordx2 s[{sO}:{sO+1}], s[0:1], 104
    s_load_dwordx2 s[{sWS}:{sWS+1}], s[0:1], 120
    s_setprio {opts.get('aprio0', 3)}
    v_lshrrev_b32 v2, 6, v0
    v_and_b32 v1, 63, v0
    v_readfirstlane_b32 s{s_w}, v2
    s_sub_u32 s{s_aid}, s2, {NB}
    s_and_b32 s{t[0]}, s{s_aid}, 7
    s_mul_i32 s{t[0]}, s{t[0]}, 20
    s_lshr_b32 s{t[1]}, s{s_aid}, 3
    s_add_u32 s{s_aid}, s{t[0]}, s{t[1]}
    s_lshr_b32 s{s_cbk}, s{s_aid}, 4
    s_and_b32 s{s_j}, s{s_aid}, 15
    s_lshl_b32 s{s_d}, s{s_aid}, 2
    s_add_u32 s{s_d}, s{s_d}, s{s_w}
    s_mul_i32 s{s_reg}, s{s_w}, {REG}
    s_mov_b32 s{sM}, 0xffff0000
    """)
    srd(a, sWS, WS_SIZE); srd(a, sO, 5242880); srd(a, sU, 2621440)
    a(f"""
    s_lshl_b32 s{t[3]}, s{s_d}, 8
    v_lshl_add_u32 v3, v1, 2, s{t[3]}
    s_lshl_b32 s{t[3]}, s{s_d}, 1
    v_mov_b32 v4, s{t[3]}
    v_lshrrev_b32 v2, 3, v1
    v_mul_u32_u24 v2, 1280, v2
    v_and_b32 v5, 7, v1
    v_lshl_add_u32 v2, v5, 4, v2
    s_lshl_b32 s{t[0]}, s{s_j}, 2
    s_add_u32 s{t[0]}, s{t[0]}, s{s_w}
    s_mul_i32 s{t[1]}, s{t[0]}, 40960
    s_lshl_b32 s{t[2]}, s{s_cbk}, 7
    s_add_u32 s{t[1]}, s{t[1]}, s{t[2]}
    s_lshl_b32 s34, s{s_cbk}, 8
    s_add_u32 s34, s34, {WS_EP + 256}
    v_lshlrev_b32 v7, 4, v1
    v_mov_b32 v8, -1
    v_mov_b32 v9, -1
    v_mov_b32 v10, -1
    v_mov_b32 v11, -1
    s_lshl_b32 s{sYT}, s{s_cbk}, 18
    s_lshl_b32 s{t[4]}, s{s_w}, 16
    s_add_u32 s{sYT}, s{sYT}, s{t[4]}
    s_lshl_b32 s{t[4]}, s{s_j}, 10
    s_add_u32 s{sYT}, s{sYT}, s{t[4]}
    s_add_u32 s{sYT}, s{sYT}, {WS_YT}
    s_waitcnt lgkmcnt(0)
    """)
    PR = 56
    for k in range(6):
        a(f"global_load_dword v{PR+k}, v3, s[{sP+2+2*k}:{sP+3+2*k}]")
    a(f"global_load_ushort v{PR+6}, v4, s[{sP+14}:{sP+15}]")
    a(f"global_load_ushort v{PR+7}, v4, s[{sP+16}:{sP+17}]")
    a(f"""
    s_mov_b32 s{sU}, s{sP}
    s_mov_b32 s{sU+1}, s{sP+1}
    s_add_u32 s32, s{sWS}, s34
    s_addc_u32 s33, s{sWS+1}, 0
    s_load_dword s{s_tag}, s[32:33], 0
    """)
    for i in range(4):
        a(f"s_add_u32 m0, s{s_reg}, {STG + 1024*i}")
        if i: a(f"s_add_u32 s{t[1]}, s{t[1]}, 10240")
        a(f"buffer_load_dwordx4 v2, {S(sU)}, s{t[1]} offen lds")
    for i in range(4):
        a(f"s_add_u32 s{t[4]}, s{sYT}, {16384*i}")
        a(f"buffer_store_dwordx4 v[8:11], v7, {S(sWS)}, s{t[4]} offen sc1")
    stamp(a, "iss")
    BX = 16
    boxes = [(11, 13), (6, 10), (3, 5), (5, 11), (4, 12), (12, 13)]
    a(f"""
    v_lshrrev_b32 v6, 4, v1
    v_lshlrev_b32 v6, 3, v6
    v_and_b32 v5, 15, v1
    v_sub_u32 v6, v6, v5
    v_add_u32 v6, 15, v6
    v_min_u32 v6, 31, v6
    s_mov_b32 s{t[5]}, 0x10001
    """)
    for bi, (lo, hi) in enumerate(boxes):
        mask = ((1 << (hi - lo + 1)) - 1) << (lo + 15)
        b = BX + 4 * bi
        a(f"s_mov_b32 s{t[3]}, {mask}")
        a(f"v_lshrrev_b32 v5, v6, s{t[3]}")
        a(f"v_and_b32 v5, 0xff, v5")
        a(f"v_lshl_or_b32 v5, v5, 15, v5")
        for i in range(4):
            if i: a(f"v_lshrrev_b32 v{b+i}, {2*i}, v5")
            a(f"v_and_b32 v{b+i}, s{t[5]}, v{b+i if i else 5}")
            a(f"v_mul_u32_u24 v{b+i}, 0x3f80, v{b+i}")
    vGW, vGR, vF0 = 2, 3, 4
    a(f"""
    v_bfe_u32 v6, v1, 2, 2
    v_lshlrev_b32 v6, 7, v6
    v_lshrrev_b32 v5, 4, v1
    v_lshl_add_u32 v6, v5, 5, v6
    v_and_b32 v5, 3, v1
    v_lshl_add_u32 v6, v5, 3, v6
    v_add_u32 v6, s{s_reg}, v6
    s_lshl_b32 s{t[1]}, s{s_cbk}, 18
    s_lshl_b32 s{t[0]}, s{t[0]}, 12
    s_add_u32 s{t[0]}, s{t[0]}, s{t[1]}
    s_add_u32 s{t[0]}, s{t[0]}, {WS_UT}
    v_mov_b32 v5, {OOB}
    v_cmp_eq_u32 vcc, 0, v0
    v_cndmask_b32 v{vF0}, v5, v0, vcc
    v_lshl_add_u32 v{vGW}, v1, 3, s{s_reg}
    v_and_b32 v5, 31, v1
    v_mul_u32_u24 v{vGR}, {RS}, v5
    v_lshrrev_b32 v5, 5, v1
    v_lshl_add_u32 v{vGR}, v5, 4, v{vGR}
    v_add_u32 v{vGR}, s{s_reg}, v{vGR}
    s_waitcnt vmcnt(0) lgkmcnt(0)
    s_add_u32 s{s_tag}, s{s_tag}, 1
    """)
    stamp(a, "land")
    UT = 40
    for tb in range(4):
        for hf in range(2):
            a(f"{TR} v[{UT+4*tb+2*hf}:{UT+4*tb+2*hf+1}], v6 offset:{STG + 1024*tb + 512*hf}")
    for tb in range(4):
        a(f"s_waitcnt lgkmcnt({6-2*tb})")
        a(f"buffer_store_dwordx4 {vr(UT+4*tb,4)}, v7, {S(sWS)}, s{t[0]} offen offset:{1024*tb} sc1")
    a(f"s_setprio {opts.get('aprio', 0)}")
    stamp(a, "ut")
    AL, BR, CB, CC = 64, 66, 68, 72
    E1, E8, E256 = 76, 80, 84
    DT, T0, T1, T2 = 12, 13, 14, 15
    DSK = 63
    a(f"""
    v_lshlrev_b32 v{T0}, 16, v{PR+6}
    s_mov_b32 s{t[1]}, 0x3fb8aa3b
    s_mov_b32 s{t[2]}, 0x32a57060
    v_mul_f32 v{T1}, s{t[1]}, v{T0}
    v_fma_f32 v{T2}, v{T0}, s{t[1]}, -v{T1}
    v_fma_f32 v{T2}, v{T0}, s{t[2]}, v{T2}
    v_exp_f32 v{T1}, v{T1}
    v_mul_f32 v{T2}, 0x3f317218, v{T2}
    v_fma_f32 v{T1}, v{T1}, v{T2}, v{T1}
    v_cvt_pk_bf16_f32 v{DT}, v{T1}, v{T1}
    v_and_b32 v{DT}, s{sM}, v{DT}
    v_lshlrev_b32 v{DSK}, 16, v{DSK}
    v_lshlrev_b32 v{AL}, 16, v{PR}
    v_and_b32 v{AL+1}, s{sM}, v{PR}
    v_lshlrev_b32 v{BR}, 16, v{PR+1}
    v_and_b32 v{BR+1}, s{sM}, v{PR+1}
    v_lshlrev_b32 v{CB}, 16, v{PR+2}
    v_lshlrev_b32 v{CB+1}, 16, v{PR+3}
    v_and_b32 v{CB+2}, s{sM}, v{PR+2}
    v_and_b32 v{CB+3}, s{sM}, v{PR+3}
    v_lshlrev_b32 v{CC}, 16, v{PR+4}
    v_lshlrev_b32 v{CC+1}, 16, v{PR+5}
    v_and_b32 v{CC+2}, s{sM}, v{PR+4}
    v_and_b32 v{CC+3}, s{sM}, v{PR+5}
    """)
    for r in range(AL, AL + 8):
        a(f"v_mul_f32 v{r}, v{DT}, v{r}")
    a(f"""
    v_mul_f32 v{AL}, s{t[1]}, v{AL}
    v_mul_f32 v{AL+1}, s{t[1]}, v{AL+1}
    v_mul_f32 v{BR}, 0.15915494309189535, v{BR}
    v_mul_f32 v{BR+1}, 0.15915494309189535, v{BR+1}
    """)
    for ei, (E, lam) in enumerate(((E1, 1.0), (E8, 8.0), (E256, 256.0))):
        lit = "0x%08x" % struct.unpack("<I", struct.pack("<f", lam))[0]
        a(f"""
        v_mul_f32 v{DT}, {lit}, v{AL}
        v_mul_f32 v{T0}, {lit}, v{AL+1}
        v_mul_f32 v{T1}, {lit}, v{BR}
        v_mul_f32 v{T2}, {lit}, v{BR+1}
        v_exp_f32 v{DT}, v{DT}
        v_exp_f32 v{T0}, v{T0}
        v_fract_f32 v{T1}, v{T1}
        v_fract_f32 v{T2}, v{T2}
        v_cos_f32 v{E}, v{T1}
        v_sin_f32 v{E+1}, v{T1}
        v_cos_f32 v{E+2}, v{T2}
        v_sin_f32 v{E+3}, v{T2}
        v_mul_f32 v{E}, v{DT}, v{E}
        v_mul_f32 v{E+1}, v{DT}, v{E+1}
        v_mul_f32 v{E+2}, v{T0}, v{E+2}
        v_mul_f32 v{E+3}, v{T0}, v{E+3}
        """)
        if not (pk_hi and pk_lo):
            n = PR + 2 * ei
            a(f"v_sub_f32 v{n}, 0, v{E+1}\nv_sub_f32 v{n+1}, 0, v{E+3}")
            NEG[E] = n
    pk = [8, 10]; pki = [0]
    def put(val, rows, neg=False):
        p = pk[pki[0] & 1]; pki[0] += 1
        ng = "-" if neg else ""
        a(f"v_cvt_pk_bf16_f32 v{p}, v{val}, {ng}v{val+1}")
        a(f"v_cvt_pk_bf16_f32 v{p+1}, v{val+2}, {ng}v{val+3}")
        for r in rows:
            a(f"ds_write_b64 v{vGW}, v[{p}:{p+1}] offset:{RS*r}")
    H = [88 + 4 * i for i in range(6)]
    He = {0: 128, 2: 132, 4: 136, 6: 140, 8: 144}
    cmul2(He[0], CC, CB, pk_hi); put(He[0], [7])
    prev = He[0]
    for i in range(1, 8):
        d = He[i] if i % 2 == 0 else H[(i // 2) % 2]
        cmul2(d, prev, E1, pk_hi); put(d, [7 - i]); prev = d
    cmul2(He[8], He[0], E8, pk_hi)
    grow = {0: [15, 14], 2: [13], 4: [12, 11, 10], 6: [9], 8: [8]}
    G = {0: H[2], 4: H[3], 2: H[0], 6: H[1], 8: H[0]}
    for e in (0, 4, 2, 6, 8):
        cmul2(G[e], He[e], E256, pk_hi); put(G[e], grow[e])
    cmul2(H[4], G[0], E256, pk_hi); put(H[4], [16])
    cmul2(H[5], G[4], E256, pk_hi); put(H[5], [18])
    cmul2(H[0], H[4], E256, pk_hi); put(H[0], [17])
    cmul2(H[1], H[5], E256, pk_hi); put(H[1], [19])
    prev = H[0]
    for k in range(5):
        d = H[2 + (k & 1)]
        cmul2(d, prev, E256, pk_hi); put(d, [20 + k]); prev = d
    HF, LF, KA = 128, 192, 112
    for ks in range(16):
        a(f"ds_read_b128 {vr(HF+4*ks,4)}, v{vGR} offset:{32*ks}")
    stamp(a, "hi")
    a(f"""
    v_mov_b32 v5, s{s_tag}
    s_lshl_b32 s{t[4]}, s{s_aid}, 8
    s_add_u32 s{t[4]}, s{t[4]}, {WS_FL + 65536}
    s_waitcnt vmcnt(0)
    s_barrier
    s_setprio 3
    buffer_store_dword v5, v{vF0}, {S(sWS)}, s{t[4]} offen sc1
    s_setprio {opts.get('aprio', 0)}
    """)
    stamp(a, "flag")
    a(f"v_mov_b32 v8, 0x3f80\nv_mov_b32 v9, 0x3f80\nds_write_b64 v{vGW}, v[8:9]")
    pki[0] = 1
    put(E8, [1], True)
    prev = E8
    for j in range(2, 32):
        d = H[j & 1]
        cmul2(d, prev, E8, pk_lo); put(d, [j], True); prev = d
        if j == 18:
            a(f"""
            v_lshlrev_b32 v12, 8, v0
            v_mov_b32 v13, {OOB}
            v_cmp_gt_u32 vcc, 16, v0
            v_cndmask_b32 v12, v13, v12, vcc
            s_lshl_b32 s{t[0]}, s{s_cbk}, 12
            s_add_u32 s{t[0]}, s{t[0]}, {WS_FL + 65536}
            s_setprio 3
            buffer_load_dword v13, v12, {S(sWS)}, s{t[0]} offen sc1
            s_setprio {opts.get('aprio', 0)}
            """)
    for ks in range(16):
        a(f"ds_read_b128 {vr(LF+4*ks,4)}, v{vGR} offset:{32*ks}")
    stamp(a, "lo")
    a(f"""
    v_lshrrev_b32 v4, 2, v0
    v_lshlrev_b32 v5, 10, v4
    v_and_b32 v6, 3, v0
    v_lshl_add_u32 v5, v6, 4, v5
    s_lshl_b32 s{t[2]}, s{s_cbk}, 18
    s_lshl_b32 s{t[1]}, s{s_j}, 6
    s_add_u32 s{t[2]}, s{t[2]}, s{t[1]}
    s_add_u32 s{t[2]}, s{t[2]}, {WS_UT}
    s_mov_b32 s{s_sp}, 0
    s_setprio 3
    s_cmp_lg_u32 s{s_w}, 0
    s_cbranch_scc1 L_A_poll_done
    L_A_poll:
    s_waitcnt vmcnt(0)
    v_cmp_ne_u32 vcc, s{s_tag}, v13
    s_add_u32 s{s_sp}, s{s_sp}, 1
    s_and_b32 vcc_lo, vcc_lo, 0xffff
    s_cbranch_scc0 L_A_poll_done
    s_cmp_ge_u32 s{s_sp}, {SPIN_MAX}
    s_cbranch_scc1 L_A_poll_done
    s_sleep 4
    buffer_load_dword v13, v12, {S(sWS)}, s{t[0]} offen sc1
    s_branch L_A_poll
    L_A_poll_done:
    s_waitcnt lgkmcnt(0)
    s_barrier
    """)
    for i in range(4):
        a(f"buffer_load_dwordx4 {vr(UT+4*i,4)}, v5, {S(sWS)}, s{t[2]} offen sc1")
        if i < 3: a(f"s_add_u32 s{t[2]}, s{t[2]}, 65536")
    a(f"s_setprio {opts.get('aprio', 0)}")
    if genb.PROF[0]: a(f"s_mov_b32 s6, s{s_sp}")
    stamp(a, "poll")
    mf = [f"{M32} {vr(KA,16)}, {vr(HF+4*ks,4)}, {vr(LF+4*ks,4)}, {'0' if ks == 0 else vr(KA,16)}" for ks in range(16)]
    def el(arr, mu):
        o, c = ARR[arr]; return o + c - mu
    A_tab = {(0, 0): el("R16", 47), (0, 1): el("R8", 48), (1, 0): el("S16", 79), (1, 1): el("S8", 80)}
    B_tab = {(0, 0): el("R4", 48), (0, 1): el("R12", 48), (1, 0): el("S16", 111), (1, 1): el("S8", 112)}
    dO = DOo - DEo - 2; mO = MOo - MEo - 2
    vMK, vU16, vU24, vYW, vDA, vDA2, vUB, vYR = 2, 3, 6, 7, 8, 9, 10, 11
    vUW, vKD, vKA_, vKB_ = 96, 97, 98, 99
    f = L()
    f(f"""
    v_mul_u32_u24 v{vUW}, {REG}, v6
    v_lshrrev_b32 v5, 3, v4
    v_mul_u32_u24 v5, 144, v5
    v_and_b32 v4, 7, v4
    v_lshl_add_u32 v5, v4, 4, v5
    v_add_u32 v{vUW}, v{vUW}, v5
    v_mov_b32 v88, 0
    v_mov_b32 v89, 0
    v_mov_b32 v90, 0
    v_mov_b32 v91, 0
    v_lshl_add_u32 v92, v1, 4, s{s_reg}
    """)
    for off in (0, 272, 5904, 6928, 7952, 8976, 9216, YB, YB + 1024, YB + 1152):
        f(f"ds_write_b128 v92, v[88:91] offset:{off}")
    f(f"""
    v_and_b32 v4, 31, v1
    v_lshrrev_b32 v5, 5, v1
    v_lshlrev_b32 v{vKD}, 3, v5
    v_lshlrev_b32 v93, 4, v4
    v_sub_u32 v{vKD}, v{vKD}, v93
    v_add_u32 v{vKD}, s{s_reg}, v{vKD}
    v_add_u32 v{vKD}, {DEo + 2*(553-256)}, v{vKD}
    v_cmp_eq_u32 vcc, 32, v1
    v_and_b32 v93, 1, v1
    v_cndmask_b32 v{DSK}, 0, v{DSK}, vcc
    v_cmp_eq_u32 vcc, 1, v93
    v_cmp_gt_u32 s[{sEX}:{sEX+1}], 32, v1
    v_and_b32 v93, 30, v1
    v_subrev_u32 v93, s{s_reg}, v93
    """)
    for dst, tab in ((vKA_, A_tab), (vKB_, B_tab)):
        f(f"""
        v_mov_b32 v94, {MEo + 2*tab[(0,0)]}
        v_mov_b32 v95, {MEo + 2*tab[(0,1)]}
        v_cndmask_b32 v94, v94, v95, vcc
        v_mov_b32 v95, {MEo + 2*tab[(1,0)]}
        v_mov_b32 v100, {MEo + 2*tab[(1,1)]}
        v_cndmask_b32 v95, v95, v100, vcc
        v_cndmask_b32 v94, v95, v94, s[{sEX}:{sEX+1}]
        v_sub_u32 v{dst}, v94, v93
        """)
    f(f"""
    v_and_b32 v12, 15, v1
    v_lshrrev_b32 v13, 4, v1
    v_lshlrev_b32 v14, 3, v13
    v_lshlrev_b32 v15, 1, v12
    v_sub_u32 v{vMK}, v14, v15
    v_and_b32 v15, 1, v1
    v_mul_u32_u24 v15, {mO}, v15
    v_add3_u32 v{vMK}, v{vMK}, v15, s{s_reg}
    v_add_u32 v{vMK}, {MEo}, v{vMK}
    v_lshl_add_u32 v14, v12, 4, v14
    v_add_u32 v15, 48, v14
    v_lshrrev_b32 v{vU16}, 6, v15
    v_lshlrev_b32 v{vU16}, 4, v{vU16}
    v_lshl_add_u32 v{vU16}, v15, 1, v{vU16}
    v_add_u32 v{vU16}, s{s_reg}, v{vU16}
    v_add_u32 v15, 40, v14
    v_lshrrev_b32 v{vU24}, 6, v15
    v_lshlrev_b32 v{vU24}, 4, v{vU24}
    v_lshl_add_u32 v{vU24}, v15, 1, v{vU24}
    v_add_u32 v{vU24}, s{s_reg}, v{vU24}
    v_lshlrev_b32 v{vYW}, 6, v12
    v_lshl_add_u32 v{vYW}, v13, 4, v{vYW}
    v_lshrrev_b32 v15, 2, v12
    v_lshl_add_u32 v{vYW}, v15, 4, v{vYW}
    v_add_u32 v{vYW}, s{s_reg}, v{vYW}
    v_lshlrev_b32 v14, 4, v5
    v_lshlrev_b32 v15, 1, v4
    v_sub_u32 v{vDA}, v14, v15
    v_and_b32 v15, 1, v1
    v_mul_u32_u24 v15, {dO}, v15
    v_add3_u32 v{vDA}, v{vDA}, v15, s{s_reg}
    v_add_u32 v{vDA}, {DEo + 2*(CD - 16*33)}, v{vDA}
    v_add_u32 v{vDA2}, 576, v{vDA}
    v_mul_u32_u24 v{vUB}, 144, v4
    v_add3_u32 v{vUB}, v{vUB}, v14, s{s_reg}
    v_mul_u32_u24 v{vYR}, 272, v4
    v_add3_u32 v{vYR}, v{vYR}, v14, s{s_reg}
    v_mov_b32 v101, s{s_reg}
    """)
    emit(mix(mf, ["\n".join(f[5*k:5*k+5]) for k in range((len(f) + 4) // 5)]))
    stamp(a, "kgen")
    a(f"v_add_f32 v{KA+3}, v{KA+3}, v{DSK}")
    for q, off in ((0, 512), (1, 0)):
        k = KA + 4 * q; p = 88 + 4 * q
        a(f"""
        v_cvt_pk_bf16_f32 v{p}, v{k}, v{k+1}
        v_cvt_pk_bf16_f32 v{p+1}, v{k+2}, v{k+3}
        v_cvt_pk_bf16_f32 v{p+2}, v{k+1}, v{k+2}
        ds_write_b64 v{vKD}, v[{p}:{p+1}] offset:{off + dO}
        ds_write_b16 v{vKD}, v{p} offset:{off}
        ds_write_b32 v{vKD}, v{p+2} offset:{off + 2}
        ds_write_b16_d16_hi v{vKD}, v{p+1} offset:{off + 6}
        """)
    a(f"""
    v_cvt_pk_bf16_f32 v102, v{KA+8}, v{KA+9}
    v_cvt_pk_bf16_f32 v103, v{KA+10}, v{KA+11}
    v_cvt_pk_bf16_f32 v104, v{KA+12}, v{KA+8}
    ds_write_b16_d16_hi v{vKA_}, v102
    ds_write_b16_d16_hi v{vKA_}, v102 offset:{mO}
    ds_write_b16 v{vKB_}, v103 offset:32
    ds_write_b16 v{vKB_}, v103 offset:{32+mO}
    ds_write_b16_d16_hi v{vKB_}, v103
    ds_write_b16_d16_hi v{vKB_}, v103 offset:{mO}
    s_mov_b32 exec_lo, -2
    s_mov_b32 exec_hi, -2
    ds_write_b16 v{vKA_}, v102 offset:32
    ds_write_b16 v{vKA_}, v102 offset:{32+mO}
    s_mov_b64 exec, 1
    """)
    for tap in (512, 513, 514):
        a(f"ds_write_b16 v101, v102 offset:{DEo + 2*(CD-tap)}")
        a(f"ds_write_b16 v101, v102 offset:{DOo + 2*(CD-tap-1)}")
    a(f"ds_write_b16 v101, v104 offset:{MEo + 2*el('S16',127)}")
    a(f"ds_write_b16 v101, v104 offset:{MOo + 2*el('S16',127) - 2}")
    a(f"s_mov_b32 exec_hi, 1\ns_mov_b32 exec_lo, 0")
    for arr, mu in (("R16", 63), ("T2", 64)):
        a(f"ds_write_b16 v101, v102 offset:{MEo + 2*el(arr,mu)}")
        a(f"ds_write_b16 v101, v102 offset:{MOo + 2*el(arr,mu) - 2}")
    a("s_mov_b64 exec, -1")
    for i in range(4):
        a(f"s_waitcnt vmcnt({3-i})")
        a(f"ds_write_b128 v{vUW}, {vr(UT+4*i,4)} offset:{UB + 144*9 + 1152*i}")
    a("s_waitcnt lgkmcnt(0)\ns_barrier")
    stamp(a, "img")
    KS, UF, AC2, GT, WO_, DC, AR, BRr = 40, 84, 108, 132, 160, 176, 208, 236
    NAR, NBR, PF = 7, 5, 3
    q = LdsQ(a)
    def khalf(r, arr, dl):
        o, c = ARR[arr]
        off = (o + c - 16 * dl) // 2
        q.issue(f"ds_read2_b32 v[{r}:{r+1}], v{vMK} offset0:{off} offset1:{off+1}", "ks")
    def rdU(blk):
        r = UF + 8 * (blk % 3)
        q.issue(f"ds_read_b128 {vr(r,4)}, v{vU16} offset:{UB + 144*8 + 576*blk}", f"u{blk}")
        q.issue(f"ds_read_b128 {vr(r+4,4)}, v{vU24} offset:{UB + 144*8 + 576*blk}", f"u{blk}")
    def rdA(ka):
        off = (34 - ka) * 32
        reg = vDA
        if off >= 576:
            reg, off = vDA2, off - 576
        r = AR + 4 * (ka % NAR)
        q.issue(f"ds_read2_b32 v[{r}:{r+1}], v{reg} offset0:{off//4} offset1:{off//4+1}", f"d{ka}")
        q.issue(f"ds_read2_b32 v[{r+2}:{r+3}], v{reg} offset0:{off//4+2} offset1:{off//4+3}", f"d{ka}")
    def rdB(n):
        x0 = 48 - 16 * n
        fl = x0 // 64; wi = x0 - 64 * fl
        q.issue(f"ds_read_b128 {vr(BRr+4*(n%NBR),4)}, v{vUB} offset:{UB + 144*(9+fl) + 2*wi}", f"d{n}")
    def issue(n):
        if n <= 34: rdA(n)
        if n <= 36: rdB(n)
    tiles = [(0, 0), (1, 0), (2, 0), (1, 1), (3, 0), (4, 1), (5, 0)]
    M = []
    def gen(blk):
        M.append(lambda: q.wait(f"u{blk}"))
        for i, (bx, uf) in enumerate(tiles[:7 if blk < 4 else 4]):
            M.append(f"{MF32} {vr(GT+4*i,4)}, {vr(UF+8*(blk%3)+4*uf,4)}, {vr(BX+4*bx,4)}, 0")
        if blk + 3 < 6:
            M.append(lambda: rdU(blk + 3))
    def cvt(blk):
        for i in range(7 if blk < 4 else 4):
            M.append(f"v_cvt_pk_bf16_f32 v{WO_+2*i}, v{GT+4*i}, v{GT+4*i+1}\nv_cvt_pk_bf16_f32 v{WO_+2*i+1}, v{GT+4*i+2}, v{GT+4*i+3}")
    started = set()
    def mm(op, nt, A, B, n):
        D = vr(AC2 + 4 * (nt - 2), 4)
        c = D if nt in started else "0"
        started.add(nt)
        M.append(f"{op} {D}, {vr(A,n)}, {vr(B,n)}, {c}")
    def conv(blk):
        w = WO_
        M.append(lambda: q.wait("ks"))
        if blk < 4:
            mm(MF16, blk + 4, w + 12, KS + 40, 2)
        for i, dl in enumerate((2, 3)):
            if blk + dl <= 7:
                mm(MF32, blk + dl, w, KS + 4 * i, 4)
                mm(MF32, blk + dl, w + 4, KS + 12 + 4 * i, 4)
        if blk < 4:
            for i, dl in reversed(list(enumerate((4, 5, 6, 7)))):
                if blk + dl <= 7:
                    mm(MF32, blk + dl, w + 8, KS + 24 + 4 * i, 4)
            mm(MF32, blk + 4, w, KS + 8, 4)
            mm(MF32, blk + 4, w + 4, KS + 20, 4)
    ksr = []
    for i, dl in enumerate((2, 3, 4)):
        ksr += [(KS + 4 * i, "R4", dl), (KS + 4 * i + 2, "R8", dl), (KS + 12 + 4 * i, "R12", dl), (KS + 12 + 4 * i + 2, "R16", dl)]
    for i, dl in enumerate((4, 5, 6, 7)):
        ksr += [(KS + 24 + 4 * i, "S8", dl), (KS + 24 + 4 * i + 2, "S16", dl)]
    ksr.append((KS + 40, "T2", 4))
    M.append(lambda: rdU(1)); M.append(lambda: rdU(2))
    gen(0)
    for x in ksr:
        M.append(lambda x=x: khalf(*x))
    for blk in range(6):
        cvt(blk)
        if blk + 1 < 6:
            gen(blk + 1)
        conv(blk)
    M.append("s_nop 3")
    for nt in range(2, 8):
        M.append(lambda nt=nt: q.issue(f"ds_write_b128 v{vYW}, {vr(AC2+4*(nt-2),4)} offset:{YB + 1088*nt}", "yw"))
    YR = 40
    for mt in range(2):
        for i in range(4):
            M.append(lambda mt=mt, i=i: q.issue(f"ds_read_b128 {vr(YR+16*mt+4*i,4)}, v{vYR} offset:{YB + 128*mt + 32*i}", "yr"))
    per = -(-len(M) // 68)
    mi = [0]
    def sprinkle():
        for _ in range(per):
            if mi[0] < len(M):
                x = M[mi[0]]; mi[0] += 1
                a(x) if isinstance(x, str) else x()
    for n in range(PF):
        issue(n)
    rdU(0)
    for n in range(37):
        issue(n + PF)
        q.wait(f"d{n}")
        B = vr(BRr + 4 * (n % NBR), 4)
        if n <= 34:
            a(f"{M32} {vr(DC+16,16)}, {vr(AR+4*(n%NAR),4)}, {B}, {'0' if n == 0 else vr(DC+16,16)}")
            sprinkle()
        if n >= 2:
            a(f"{M32} {vr(DC,16)}, {vr(AR+4*((n-2)%NAR),4)}, {B}, {'0' if n == 2 else vr(DC,16)}")
            sprinkle()
    assert mi[0] >= len(M)
    stamp(a, "conv")
    a(f"""
    s_lshl_b32 s{t[0]}, s{s_w}, 6
    v_lshrrev_b32 v2, 5, v1
    v_lshlrev_b32 v2, 3, v2
    v_sub_u32 v2, v{vUB}, v2
    v_add_u32 v2, s{t[0]}, v2
    v_bfe_u32 v3, v1, 2, 2
    v_mul_u32_u24 v3, {REG+64}, v3
    v_lshrrev_b32 v4, 4, v1
    v_lshl_add_u32 v3, v4, 5, v3
    v_and_b32 v4, 3, v1
    v_lshl_add_u32 v3, v4, 3, v3
    s_mul_i32 s{t[1]}, s{s_w}, 1152
    s_add_u32 s{t[1]}, s{t[1]}, {YB}
    v_add_u32 v3, s{t[1]}, v3
    v_lshlrev_b32 v7, 4, v1
    s_waitcnt lgkmcnt(0)
    """)
    for mt in (1, 0):
        for i in range(4):
            k = DC + 16 * mt + 4 * i; y = YR + 16 * mt + 4 * i; p = 84 + 2 * (4 * mt + i)
            for e in range(4):
                a(f"v_add_f32 v{k+e}, v{k+e}, v{y+e}")
            a(f"v_cvt_pk_bf16_f32 v{p}, v{k}, v{k+1}")
            a(f"v_cvt_pk_bf16_f32 v{p+1}, v{k+2}, v{k+3}")
            a(f"ds_write_b64 v2, v[{p}:{p+1}] offset:{YB + 64*mt + 16*i}")
    a("s_waitcnt lgkmcnt(0)\ns_barrier\ns_setprio 3")
    for i in range(8):
        a(f"{TR} v[{40+2*i}:{41+2*i}], v3 offset:{144*i}")
    for i in range(4):
        a(f"s_add_u32 s{t[4]}, s{sYT}, {16384*i}")
        a(f"s_waitcnt lgkmcnt({6-2*i})")
        a(f"buffer_store_dwordx4 {vr(40+4*i,4)}, v7, {S(sWS)}, s{t[4]} offen sc1")
    stamp(a, "yt")
    a(f"""
    s_lshl_b32 s{t[0]}, s{s_cbk}, 18
    s_lshl_b32 s{t[1]}, s{s_j}, 14
    s_add_u32 s{t[0]}, s{t[0]}, s{t[1]}
    s_lshl_b32 s{t[1]}, s{s_w}, 12
    s_add_u32 s{t[0]}, s{t[0]}, s{t[1]}
    s_add_u32 s{t[0]}, s{t[0]}, {WS_YT}
    v_lshrrev_b32 v2, 5, v1
    v_mul_u32_u24 v2, {REG}, v2
    v_and_b32 v3, 31, v1
    v_mul_u32_u24 v3, 144, v3
    s_lshl_b32 s{t[1]}, s{s_w}, 5
    v_add3_u32 v2, v2, v3, s{t[1]}
    v_lshrrev_b32 v3, 3, v1
    v_mul_u32_u24 v4, 144, v3
    v_and_b32 v5, 7, v1
    v_lshl_add_u32 v4, v5, 4, v4
    v_add_u32 v4, s{s_reg}, v4
    v_mul_u32_u24 v3, 2560, v3
    v_lshl_add_u32 v3, v5, 4, v3
    s_lshl_b32 s{t[2]}, s{s_j}, 2
    s_add_u32 s{t[2]}, s{t[2]}, s{s_w}
    s_mul_i32 s{t[2]}, s{t[2]}, 81920
    s_lshl_b32 s{t[3]}, s{s_cbk}, 7
    s_add_u32 s{t[2]}, s{t[2]}, s{t[3]}
    s_mov_b32 s{s_sp}, 0
    L_A_y:
    """)
    for i in range(4):
        a(f"buffer_load_dwordx4 {vr(56+4*i,4)}, v7, {S(sWS)}, s{t[0]} offen offset:{1024*i} sc1")
    a(f"s_add_u32 s{s_sp}, s{s_sp}, 1\ns_waitcnt vmcnt(0)")
    a("v_max3_u32 v8, v56, v57, v58\nv_max3_u32 v9, v59, v60, v61")
    a("v_max3_u32 v8, v8, v62, v63\nv_max3_u32 v9, v9, v64, v65\nv_max3_u32 v8, v8, v66, v67\nv_max3_u32 v9, v9, v68, v69")
    a(f"""
    v_max3_u32 v8, v8, v70, v71
    v_max_u32 v8, v8, v9
    v_cmp_eq_u32 vcc, -1, v8
    s_cmp_ge_u32 s{s_sp}, {SPIN_MAX}
    s_cbranch_scc1 L_A_y_done
    s_cbranch_vccz L_A_y_done
    s_sleep 4
    s_branch L_A_y
    L_A_y_done:
    """)
    if genb.PROF[0]: a(f"s_mov_b32 s7, s{s_sp}")
    for i in range(4):
        a(f"ds_write_b64 v2, v[{56+4*i}:{57+4*i}] offset:{8*i}")
        a(f"ds_write_b64 v2, v[{58+4*i}:{59+4*i}] offset:{2*REG + 8*i}")
    a("s_waitcnt lgkmcnt(0)\ns_barrier")
    for i in range(4):
        a(f"ds_read_b128 {vr(40+4*i,4)}, v4 offset:{1152*i}")
    for i in range(4):
        a(f"s_waitcnt lgkmcnt({3-i})")
        a(f"buffer_store_dwordx4 {vr(40+4*i,4)}, v3, {S(sO)}, s{t[2]} offen")
        if i < 3: a(f"s_add_u32 s{t[2]}, s{t[2]}, 20480")
    a(f"""
    s_cmp_lg_u32 s{s_j}, 0
    s_cbranch_scc1 L_A_fin
    v_mov_b32 v1, {OOB}
    v_cmp_eq_u32 vcc, 0, v0
    v_cndmask_b32 v1, v1, v0, vcc
    v_mov_b32 v2, s{s_tag}
    buffer_store_dword v2, v1, {S(sWS)}, s34 offen sc1
    L_A_fin:
    """)
    if genb.PROF[0]: a("s_waitcnt vmcnt(0)")
    prof_end(a, "A")
    a("L_A_end:\ns_endpgm")
```

```python
from dsl import *

WS_KV = 0
WS_O = 1 << 20
WS_CLR_BYTES = WS_O + 128 * 20 * 1024
WS_UT = 4 << 20
WS_FL = 7 << 20
WS_EP = WS_FL + (1 << 19)
WS_DBG = 8 << 20
WS_SIZE = 64 << 20
NB, NA = 256, 160
OOB = 0x40000000

WSLOT = {0: 20480, 1: 0, 2: 10240}
XBASE = 30720
XSLOT = {0: 0, 1: 32768, 2: 16384}
WPHI = 79872
PKB, VB = 20480, 40960
QA, QB, QD, QC = 0, 10240, 53248, 63488
ZERO, KVB = 73728, 74752

sX, sW, sWS, sO, sWO, sPH, sD = 8, 12, 16, 20, 24, 28, 32
S = lambda b: f"s[{b}:{b+3}]"
s_hp, s_rb, s_kc, s_w = 36, 37, 38, 39
s_t0, s_t1, s_t2, s_t3, s_t4, s_t5 = 40, 41, 42, 43, 44, 45
s_xm0, s_wm0, s_wm2 = 46, 47, 48
s_L, s_spin = 50, 52
s_rot = 53
s_m0a, s_m0b = 54, 56
s_rb2, s_cb = 58, 59
s_ex = 60
s_tag, s_pend = 62, 49

MF32 = "v_mfma_f32_16x16x32_bf16"
MF16 = "v_mfma_f32_16x16x16_bf16"
TR = "ds_read_b64_tr_b16"
SPIN_MAX = 4000

def srd(a, base, size):
    a(f"s_mov_b32 s{base+2}, {size}\ns_mov_b32 s{base+3}, 0x00020000")

def mix(prim, fill, start=0, every=1):
    out = []; fi = 0
    for i, p in enumerate(prim):
        out.append(p)
        if i >= start and (i - start) % every == 0 and fi < len(fill):
            out.append(fill[fi]); fi += 1
    return out + list(fill[fi:])

class L(list):
    def __call__(self, t):
        self.extend(x.strip() for x in t.split("\n") if x.strip())

def softmax(a, P, E, OUT, T):
    mx, mn, r0, r1 = OUT, OUT + 2, OUT + 4, OUT + 6
    a(f"v_max3_f32 v{mx}, v{P}, v{P+1}, v{P+2}")
    a(f"v_min3_f32 v{mn}, v{P}, v{P+1}, v{P+2}")
    a(f"v_max3_f32 v{r0}, v{P+3}, v{P+4}, v{P+5}")
    a(f"v_min3_f32 v{r1}, v{P+3}, v{P+4}, v{P+5}")
    for i in range(6, 18, 4):
        a(f"v_max3_f32 v{mx}, v{mx}, v{P+i}, v{P+i+1}")
        a(f"v_min3_f32 v{mn}, v{mn}, v{P+i}, v{P+i+1}")
        a(f"v_max3_f32 v{r0}, v{r0}, v{P+i+2}, v{P+i+3}")
        a(f"v_min3_f32 v{r1}, v{r1}, v{P+i+2}, v{P+i+3}")
    a(f"v_max3_f32 v{mx}, v{mx}, v{P+18}, v{P+19}")
    a(f"v_min3_f32 v{mn}, v{mn}, v{P+18}, v{P+19}")
    a(f"v_max_f32 v{mx}, v{mx}, v{r0}")
    a(f"v_min_f32 v{mn}, v{mn}, v{r1}")
    a(f"v_mul_f32 v{mx}, s{s_L}, v{mx}")
    a(f"v_mul_f32 v{mn}, s{s_L}, v{mn}")
    for i in range(0, 20, 2):
        a(f"v_pk_fma_f32 v[{E+i}:{E+i+1}], v[{P+i}:{P+i+1}], s[{s_L}:{s_L+1}], v[{mx}:{mx+1}] op_sel:[0,0,0] op_sel_hi:[1,1,0] neg_lo:[0,0,1] neg_hi:[0,0,1]")
        a(f"v_pk_fma_f32 v[{E+20+i}:{E+21+i}], v[{P+i}:{P+i+1}], s[{s_L}:{s_L+1}], v[{mn}:{mn+1}] op_sel:[0,0,0] op_sel_hi:[1,1,0] neg_lo:[1,0,0] neg_hi:[1,0,0]")
    for i in range(40):
        a(f"v_exp_f32 v{E+i}, v{E+i}")
    a(f"v_pk_add_f32 v[{r0}:{r0+1}], v[{E}:{E+1}], v[{E+2}:{E+3}]")
    a(f"v_pk_add_f32 v[{r1}:{r1+1}], v[{E+20}:{E+21}], v[{E+22}:{E+23}]")
    for i in range(4, 20, 2):
        a(f"v_pk_add_f32 v[{r0}:{r0+1}], v[{r0}:{r0+1}], v[{E+i}:{E+i+1}]")
        a(f"v_pk_add_f32 v[{r1}:{r1+1}], v[{r1}:{r1+1}], v[{E+20+i}:{E+21+i}]")
    a(f"v_add_f32 v{r0}, v{r0}, v{r0+1}")
    a(f"v_add_f32 v{r1}, v{r1}, v{r1+1}")
    a(f"v_rcp_f32 v{r0}, v{r0}")
    a(f"v_rcp_f32 v{r1}, v{r1}")
    for i in range(0, 20, 2):
        a(f"v_pk_mul_f32 v[{E+i}:{E+i+1}], v[{E+i}:{E+i+1}], v[{r0}:{r0+1}] op_sel:[0,0] op_sel_hi:[1,0]")
        a(f"v_pk_mul_f32 v[{E+20+i}:{E+21+i}], v[{E+20+i}:{E+21+i}], v[{r1}:{r1+1}] op_sel:[0,0] op_sel_hi:[1,0]")
    for i in range(20):
        a(f"v_cvt_pk_bf16_f32 v{OUT+i}, v{E+2*i}, v{E+2*i+1}")

def dump(a, regs, vt, slot=0):
    a(f"s_lshl_b32 s63, s2, 16\ns_add_u32 s63, s63, {WS_DBG}\nv_lshlrev_b32 v{vt}, 2, v0")
    for i, r in enumerate(regs):
        a(f"buffer_store_dword v{r}, v{vt}, {S(sWS)}, s63 offen\ns_add_u32 s63, s63, 1024")
    a("s_waitcnt vmcnt(0)")

PROF = [False, 0, []]
def stamp(a, name):
    if not PROF[0]:
        return
    i = PROF[1]; PROF[1] += 1; PROF[2].append(name)
    assert i < 18
    a(f"s_memtime s[{64+2*i}:{65+2*i}]")
SPAN = [False]
def span_mark(a, idx):
    if not SPAN[0]:
        return
    a(f"""
    s_memrealtime s[96:97]
    s_waitcnt lgkmcnt(0)
    v_mov_b32 v254, s96
    v_mov_b32 v255, {4*idx}
    s_mov_b64 exec, 1
    global_atomic_umax v255, v254, s[98:99]
    s_mov_b64 exec, -1
    """)
def prof_begin(a):
    PROF[1] = 0; PROF[2].clear()
    if SPAN[0]:
        a("s_memrealtime s[100:101]\ns_load_dwordx2 s[98:99], s[0:1], 112")
    if PROF[0]:
        a("s_memrealtime s[100:101]")
    stamp(a, "start")
def prof_end(a, tag):
    if SPAN[0]:
        k = 0 if tag == "B" else 2
        a(f"""
        s_waitcnt vmcnt(0)
        s_memrealtime s[96:97]
        s_waitcnt lgkmcnt(0)
        s_cmp_lg_u32 s39, 0
        s_cbranch_scc1 L_span_{tag}
        s_not_b32 s100, s100
        v_mov_b32 v2, s96
        v_mov_b32 v3, s100
        v_mov_b32 v1, {4*k}
        s_mov_b64 exec, 1
        global_atomic_umax v1, v2, s[98:99]
        global_atomic_umax v1, v3, s[98:99] offset:4
        s_sub_u32 s96, s96, s100
        L_span_{tag}:
        """)
    if not PROF[0]:
        return
    stamp(a, "end")
    a(f"""
    s_waitcnt lgkmcnt(0) vmcnt(0)
    v_lshrrev_b32 v1, 6, v0
    s_lshl_b32 s3, s2, 2
    v_add_u32 v1, s3, v1
    v_lshlrev_b32 v1, 7, v1
    s_mov_b32 s3, {WS_DBG}
    v_mov_b32 v2, s100
    buffer_store_dword v2, v1, {S(sWS)}, s3 offen offset:124
    s_getreg_b32 s4, hwreg(HW_REG_HW_ID)
    s_getreg_b32 s5, hwreg(HW_REG_XCC_ID)
    v_mov_b32 v2, s4
    buffer_store_dword v2, v1, {S(sWS)}, s3 offen offset:120
    v_mov_b32 v2, s5
    buffer_store_dword v2, v1, {S(sWS)}, s3 offen offset:116
    v_mov_b32 v2, s6
    buffer_store_dword v2, v1, {S(sWS)}, s3 offen offset:112
    v_mov_b32 v2, s7
    buffer_store_dword v2, v1, {S(sWS)}, s3 offen offset:108
    """)
    for i in range(PROF[1]):
        a(f"v_mov_b32 v2, s{64+2*i}\nbuffer_store_dword v2, v1, {S(sWS)}, s3 offen offset:{4*i}")
    print("PROF", tag, PROF[2])

def gen_b(a, dbg=None):
    vXA0, vXA1, vWA0, vWA1, vWA2, vXR0, vXR1, vWR = 1, 2, 3, 4, 5, 6, 7, 8
    vQA0, vQA1, vQA2 = 9, 10, 11
    t0, t1, t2, t3 = 12, 13, 14, 15
    ACC, WF, XF = 16, 56, 96
    emit = lambda lst: [a(x) for x in lst]
    a("L_B:")
    prof_begin(a)
    a(f"""
    s_load_dwordx2 s[{sX}:{sX+1}], s[0:1], 72
    s_load_dwordx2 s[{sW}:{sW+1}], s[0:1], 80
    s_load_dwordx2 s[{sWS}:{sWS+1}], s[0:1], 120
    s_load_dwordx2 s[{sPH}:{sPH+1}], s[0:1], 88
    s_load_dwordx2 s[{sWO}:{sWO+1}], s[0:1], 96
    s_load_dwordx2 s[{sO}:{sO+1}], s[0:1], 104
    s_setprio 3
    v_lshrrev_b32 v{t0}, 6, v0
    v_readfirstlane_b32 s{s_w}, v{t0}
    s_and_b32 s{s_t0}, s2, 7
    s_lshr_b32 s{s_t1}, s2, 3
    s_and_b32 s{s_hp}, s{s_t0}, 1
    s_lshl_b32 s{s_hp}, s{s_hp}, 3
    s_and_b32 s{s_cb}, s{s_t1}, 7
    s_add_u32 s{s_hp}, s{s_hp}, s{s_cb}
    s_lshr_b32 s{s_rb}, s{s_t0}, 1
    s_lshl_b32 s{s_rb}, s{s_rb}, 2
    s_lshr_b32 s{s_t2}, s{s_t1}, 3
    s_add_u32 s{s_rb}, s{s_rb}, s{s_t2}
    s_lshl_b32 s{s_rb2}, s{s_t0}, 2
    s_add_u32 s{s_rb2}, s{s_rb2}, s{s_t2}
    s_mul_i32 s{s_kc}, s{s_rb}, 3
    s_add_u32 s{s_kc}, s{s_kc}, s{s_hp}
    s_mul_i32 s{s_t0}, s{s_kc}, 6554
    s_lshr_b32 s{s_t0}, s{s_t0}, 16
    s_mul_i32 s{s_t0}, s{s_t0}, 10
    s_sub_u32 s{s_kc}, s{s_kc}, s{s_t0}
    s_mov_b32 s{s_rot}, s{s_kc}
    """)
    srd(a, sX, 2621440); srd(a, sW, 2457600)
    a(f"""
    v_and_b32 v{t1}, 63, v0
    v_lshrrev_b32 v{t2}, 3, v{t1}
    s_lshl_b32 s{s_t0}, s{s_rb}, 7
    s_lshl_b32 s{s_t1}, s{s_w}, 5
    s_add_u32 s{s_t0}, s{s_t0}, s{s_t1}
    v_add_u32 v{t2}, s{s_t0}, v{t2}
    v_mul_u32_u24 v{t2}, 1280, v{t2}
    v_and_b32 v{t3}, 7, v0
    v_lshrrev_b32 v{t0}, 4, v{t1}
    v_xor_b32 v{t3}, v{t3}, v{t0}
    v_lshl_add_u32 v{vXA0}, v{t3}, 4, v{t2}
    v_xor_b32 v{t3}, 4, v{t3}
    v_lshl_add_u32 v{vXA1}, v{t3}, 4, v{t2}
    v_add_u32 v{vXA1}, 10240, v{vXA1}
    s_lshl_b32 s{s_xm0}, s{s_w}, 12
    s_add_u32 s{s_xm0}, s{s_xm0}, {XBASE}
    s_lshl_b32 s{s_wm0}, s{s_w}, 10
    s_lshl_b32 s{s_wm2}, s{s_w}, 9
    s_add_u32 s{s_wm2}, s{s_wm2}, 8192
    s_mul_i32 s{s_t4}, s{s_hp}, 80
    s_add_u32 s{s_t3}, s{s_t4}, 1280
    """)
    def wunit(dst, j):
        if j < 2:
            a(f"v_add_u32 v{t0}, {256*j}, v0")
        else:
            a(f"v_add_u32 v{t0}, s{s_t1}, v{t1}\nv_add_u32 v{t0}, 512, v{t0}")
        a(f"""
        v_mul_u32_u24 v{t2}, 6554, v{t0}
        v_lshrrev_b32 v{t2}, 16, v{t2}
        v_mul_u32_u24 v{t3}, 10, v{t2}
        v_sub_u32 v{t0}, v{t0}, v{t3}
        v_lshrrev_b32 v{t3}, 1, v{t2}
        v_xor_b32 v{t3}, v{t3}, v{t2}
        v_and_b32 v{t3}, 4, v{t3}
        v_mul_u32_u24 v{t3}, 3, v{t3}
        v_xor_b32 v{t2}, v{t2}, v{t3}
        v_cmp_lt_u32 vcc, 4, v{t0}
        v_mul_u32_u24 v{t2}, 3840, v{t2}
        v_lshl_add_u32 v{t2}, v{t0}, 4, v{t2}
        v_mov_b32 v{t3}, 1200
        v_cndmask_b32 v{t3}, 0, v{t3}, vcc
        v_add3_u32 v{dst}, v{t2}, v{t3}, s{s_t3}
        """)
    wunit(vWA0, 0); wunit(vWA1, 1); wunit(vWA2, 2)
    a("s_waitcnt lgkmcnt(0)")

    def dma_chunk(slot):
        xs, wsl = XSLOT[slot], WSLOT[slot]
        g = []
        g.append(f"""s_lshl_b32 s{s_t0}, s{s_kc}, 7
        s_add_u32 m0, s{s_wm0}, {wsl}
        s_mul_i32 s{s_t2}, s{s_kc}, 245760
        buffer_load_dwordx4 v{vWA0}, {S(sW)}, s{s_t2} offen lds""")
        g.append(f"""s_add_u32 m0, s{s_wm0}, {wsl+4096}
        s_add_u32 s{s_t1}, s{s_t0}, 20480
        buffer_load_dwordx4 v{vWA1}, {S(sW)}, s{s_t2} offen lds""")
        g.append(f"""s_add_u32 m0, s{s_wm2}, {wsl}
        s_mov_b64 exec, 0xffffffff
        buffer_load_dwordx4 v{vWA2}, {S(sW)}, s{s_t2} offen lds
        s_mov_b64 exec, -1""")
        g.append(f"""s_add_u32 m0, s{s_xm0}, {xs}
        s_add_u32 s{s_kc}, s{s_kc}, 1
        buffer_load_dwordx4 v{vXA0}, {S(sX)}, s{s_t0} offen lds""")
        g.append(f"""s_add_u32 m0, s{s_xm0}, {xs+1024}
        s_cmp_eq_u32 s{s_kc}, 10
        buffer_load_dwordx4 v{vXA1}, {S(sX)}, s{s_t0} offen lds
        s_cselect_b32 s{s_kc}, 0, s{s_kc}""")
        g.append(f"""s_add_u32 m0, s{s_xm0}, {xs+2048}
        s_nop 0
        buffer_load_dwordx4 v{vXA0}, {S(sX)}, s{s_t1} offen lds""")
        g.append(f"""s_add_u32 m0, s{s_xm0}, {xs+3072}
        s_nop 0
        buffer_load_dwordx4 v{vXA1}, {S(sX)}, s{s_t1} offen lds""")
        return g
    stamp(a, "args")
    emit(dma_chunk(0))
    emit(dma_chunk(1))
    srd(a, sWS, WS_SIZE); srd(a, sO, 5242880); srd(a, sWO, 819200); srd(a, sPH, 25600)
    a(f"""
    s_add_u32 s4, s{sWS}, {WS_EP}
    s_addc_u32 s5, s{sWS+1}, 0
    s_load_dword s{s_tag}, s[4:5], 0
    """)
    a(f"""
    s_and_b32 s{s_t0}, s{s_w}, 1
    s_mul_i32 s{s_t1}, s{s_t0}, 960
    s_add_u32 m0, s{s_t1}, {WPHI}
    s_lshl_b32 s{s_t2}, s{s_hp}, 1
    s_add_u32 s{s_t2}, s{s_t2}, s{s_t0}
    s_mul_i32 s{s_t2}, s{s_t2}, 800
    v_lshlrev_b32 v{t0}, 4, v{t1}
    s_mov_b32 exec_hi, 0x3ffff
    buffer_load_dwordx4 v{t0}, {S(sPH)}, s{s_t2} offen lds
    s_mov_b64 exec, -1
    """)
    sKV, sOM, sOL = 32, 33, 34
    a(f"""
    s_lshl_b32 s{sKV}, s{s_hp}, 4
    s_add_u32 s{sKV}, s{sKV}, s{s_rb}
    s_lshl_b32 s35, s{sKV}, 8
    s_add_u32 s35, s35, {WS_FL}
    s_lshl_b32 s{sKV}, s{sKV}, 12
    s_lshl_b32 s{s_t0}, s{s_rb}, 3
    s_lshl_b32 s{s_t1}, s{s_w}, 1
    s_add_u32 s{s_t0}, s{s_t0}, s{s_t1}
    s_mul_i32 s{s_t0}, s{s_t0}, 20480
    s_add_u32 s{s_t0}, s{s_t0}, {WS_O}
    s_lshl_b32 s{sOM}, s{s_hp}, 10
    s_add_u32 s{sOM}, s{sOM}, s{s_t0}
    s_lshl_b32 s{sOL}, s{s_hp}, 8
    s_add_u32 s{sOL}, s{sOL}, s{s_t0}
    s_add_u32 s{sOL}, s{sOL}, 16384
    s_add_u32 s{s_t0}, s{sOM}, 20480
    s_add_u32 s{s_t1}, s{sOL}, 20480
    v_mov_b32 v16, -1
    v_mov_b32 v17, -1
    v_mov_b32 v18, -1
    v_mov_b32 v19, -1
    v_lshlrev_b32 v20, 4, v0
    v_lshlrev_b32 v21, 2, v{t1}
    buffer_store_dwordx4 v[16:19], v20, {S(sWS)}, s{sKV} offen sc1
    buffer_store_dwordx4 v[16:19], v{t0}, {S(sWS)}, s{sOM} offen sc1
    buffer_store_dwordx4 v[16:19], v{t0}, {S(sWS)}, s{s_t0} offen sc1
    buffer_store_dword v16, v21, {S(sWS)}, s{sOL} offen sc1
    buffer_store_dword v16, v21, {S(sWS)}, s{s_t1} offen sc1
    """)
    NEXTRA = 1
    a(f"""
    v_mov_b32 v{t2}, 0
    v_min_u32 v{t3}, 39, v{t1}
    v_lshlrev_b32 v{t3}, 2, v{t3}
    v_add_u32 v{t3}, {WPHI+800}, v{t3}
    ds_write_b32 v{t3}, v{t2}
    ds_write_b32 v{t3}, v{t2} offset:960
    v_and_b32 v{t0}, 15, v0
    v_bfe_u32 v{t2}, v0, 4, 2
    v_lshrrev_b32 v{t3}, 1, v{t0}
    v_xor_b32 v{t3}, v{t3}, v{t2}
    v_lshlrev_b32 v{t3}, 4, v{t3}
    v_lshl_add_u32 v{t3}, v{t0}, 7, v{t3}
    v_add_u32 v{vXR0}, s{s_xm0}, v{t3}
    v_xor_b32 v{vXR1}, 64, v{vXR0}
    v_lshrrev_b32 v{t3}, 1, v{t2}
    v_lshlrev_b32 v{t3}, 4, v{t3}
    v_and_b32 v{t2}, 1, v{t2}
    v_lshl_add_u32 v{t3}, v{t2}, 2, v{t3}
    v_lshrrev_b32 v{t2}, 2, v{t0}
    v_add_u32 v{t3}, v{t3}, v{t2}
    v_mul_u32_u24 v{t3}, 160, v{t3}
    v_and_b32 v{t2}, 3, v0
    v_mul_u32_u24 v{t2}, 40, v{t2}
    v_add_u32 v{vWR}, v{t3}, v{t2}
    s_mov_b32 s{s_L}, 0x3fb8aa3b
    s_mov_b32 s{s_L+1}, 0x3fb8aa3b
    s_lshl_b32 s{s_t1}, s{s_w}, 5
    """)
    for j, dst in enumerate((vQA0, vQA1, vQA2)):
        if j < 2:
            a(f"v_add_u32 v{t0}, {256*j}, v0")
        else:
            a(f"v_add_u32 v{t0}, s{s_t1}, v{t1}\nv_add_u32 v{t0}, 512, v{t0}")
        a(f"""
        v_mul_u32_u24 v{t2}, 13108, v{t0}
        v_lshrrev_b32 v{t2}, 16, v{t2}
        v_mul_u32_u24 v{t3}, 5, v{t2}
        v_sub_u32 v{t0}, v{t0}, v{t3}
        v_and_b32 v{t2}, 63, v{t2}
        v_mul_u32_u24 v{t2}, 3840, v{t2}
        v_lshl_add_u32 v{t2}, v{t0}, 4, v{t2}
        v_add_u32 v{dst}, s{s_t4}, v{t2}
        """)
    vKA, vKB, vST0, vST1 = 12, 13, 14, 15
    u0, u1, u2 = 240, 241, 242
    a(f"""
    s_lshr_b32 s{s_t0}, s{s_w}, 1
    s_and_b32 s{s_t1}, s{s_w}, 1
    s_mul_i32 s{s_t2}, s{s_t0}, 40
    s_lshl_b32 s{s_t3}, s{s_t1}, 5
    s_add_u32 s{s_t3}, s{s_t3}, s{s_t2}
    s_lshl_b32 s{s_t2}, s{s_t2}, 1
    v_bfe_u32 v{u0}, v0, 2, 4
    v_and_b32 v{u1}, 3, v0
    v_lshlrev_b32 v{u1}, 3, v{u1}
    v_mul_u32_u24 v{vKA}, 96, v{u0}
    v_add3_u32 v{vKA}, v{vKA}, v{u1}, s{s_t3}
    v_mul_u32_u24 v{vKB}, 160, v{u0}
    v_add3_u32 v{vKB}, v{vKB}, v{u1}, s{s_t2}
    s_cmp_eq_u32 s{s_t1}, 1
    s_cselect_b32 s{s_m0b}, 0xfff0fff0, 0
    s_mov_b32 s{s_m0b+1}, s{s_m0b}
    s_lshl_b32 s{s_t1}, s{s_t1}, 3
    s_add_u32 s{s_t1}, s{s_t1}, s{s_t0}
    s_mul_i32 s{s_t1}, s{s_t1}, 320
    v_bfe_u32 v{u0}, v0, 4, 2
    v_mul_u32_u24 v{u0}, 640, v{u0}
    v_and_b32 v{u1}, 15, v0
    v_lshl_add_u32 v{u0}, v{u1}, 3, v{u0}
    v_add_u32 v{u0}, s{s_t1}, v{u0}
    v_mov_b32 v{u2}, {OOB}
    v_cmp_gt_u32 vcc, 3840, v{u0}
    v_cndmask_b32 v{vST0}, v{u2}, v{u0}, vcc
    v_cmp_gt_u32 vcc, 8, v{u1}
    v_cndmask_b32 v{vST1}, v{u2}, v{vST0}, vcc
    s_waitcnt lgkmcnt(0)
    s_add_u32 s{s_tag}, s{s_tag}, 1
    """)

    def dma_q(idx, dst):
        g = []
        g.append(f"""s_add_u32 s{s_t0}, s{s_rot}, {2*idx}
        s_sub_u32 s{s_t1}, s{s_t0}, 10
        s_cmp_ge_u32 s{s_t0}, 10
        s_cselect_b32 s{s_t0}, s{s_t1}, s{s_t0}
        s_add_u32 s{s_t1}, s{s_t0}, 1
        s_add_u32 m0, s{s_wm0}, {dst}
        s_mul_i32 s{s_t0}, s{s_t0}, 245760
        buffer_load_dwordx4 v{vQA0}, {S(sW)}, s{s_t0} offen lds""")
        g.append(f"""s_add_u32 m0, s{s_wm0}, {dst+4096}
        s_cmp_eq_u32 s{s_t1}, 10
        s_cselect_b32 s{s_t1}, 0, s{s_t1}
        s_mul_i32 s{s_t1}, s{s_t1}, 245760
        s_cmp_eq_u32 s{s_w}, 0
        s_cselect_b32 s{s_t2}, s{s_t0}, s{s_t1}
        buffer_load_dwordx4 v{vQA1}, {S(sW)}, s{s_t2} offen lds""")
        g.append(f"""s_add_u32 m0, s{s_wm2}, {dst}
        s_mov_b64 exec, 0xffffffff
        buffer_load_dwordx4 v{vQA2}, {S(sW)}, s{s_t1} offen lds
        s_mov_b64 exec, -1""")
        return g

    xf = lambda c, ks, st: XF + ((c * 2 + ks) * 2 + st) * 4
    acc = lambda tau, st: ACC + (tau * 2 + st) * 4
    def reads(i, ks):
        wsl, xs = WSLOT[i % 3], XSLOT[i % 3]
        r_ = []
        for st in range(2):
            r_.append(f"ds_read_b128 {vr(xf(i,ks,st),4)}, v{vXR0 if ks == 0 else vXR1} offset:{xs + st*2048}")
        for tau in range(5):
            for hf in range(2):
                r = WF + (ks * 5 + tau) * 4 + hf * 2
                r_.append(f"{TR} v[{r}:{r+1}], v{vWR} offset:{wsl + ks*5120 + hf*1280 + 8*tau}")
        return r_
    def mfmas(i, ks):
        m_ = []
        for tau in range(5):
            for st in range(2):
                c = "0" if (i == 0 and ks == 0) else vr(acc(tau, st), 4)
                m_.append(f"{MF32} {vr(acc(tau,st),4)}, {vr(WF+(ks*5+tau)*4,4)}, {vr(xf(i,ks,st),4)}, {c}")
        return m_
    vPH, vA, vB_ = 1, 2, 3
    KS, VS, PP = 56, 66, 76
    for i in range(10):
        a.comment(f"---- kv main loop iteration {i}")
        n = {0: 7 + NEXTRA, 1: 7 + NEXTRA, 9: 6}.get(i, 7)
        a(f"s_waitcnt vmcnt({n})\ns_barrier")
        if i in (0, 3, 6, 9): stamp(a, f"it{i}")
        emit(reads(i, 0))
        d = dma_chunk((i + 2) % 3) if i < 8 else (dma_q(0, QA) + dma_q(2, QC) if i == 8 else dma_q(1, QB) + dma_q(3, QD))
        emit(mix(mfmas(i - 1, 1), d) if i else d)
        if i == 8:
            a(f"""
            v_mov_b32 v240, 0
            v_mov_b32 v241, 0
            v_mov_b32 v242, 0
            v_mov_b32 v243, 0
            v_and_b32 v244, 63, v0
            v_lshlrev_b32 v244, 4, v244
            v_add_u32 v244, {ZERO}, v244
            ds_write_b128 v244, v[240:243]
            v_bfe_u32 v246, v0, 4, 2
            v_and_b32 v247, 3, v0
            v_cmp_eq_u32 vcc, v246, v247
            v_and_b32 v245, 1, v246
            v_mul_u32_u24 v{vPH}, 960, v245
            v_bfe_u32 v247, v0, 2, 2
            v_mul_u32_u24 v247, 40, v247
            v_add_u32 v{vPH}, v{vPH}, v247
            v_add_u32 v{vPH}, {WPHI}, v{vPH}
            v_mov_b32 v247, {ZERO}
            v_cndmask_b32 v{vPH}, v247, v{vPH}, vcc
            v_lshrrev_b32 v246, 1, v246
            v_lshlrev_b32 v246, 4, v246
            v_and_b32 v247, 15, v0
            v_add_u32 v246, v246, v247
            s_lshl_b32 s{s_t1}, s{s_w}, 5
            v_add_u32 v246, s{s_t1}, v246
            v_mul_u32_u24 v{vA}, 96, v246
            v_mul_u32_u24 v247, 40, v245
            v_add_u32 v{vA}, v{vA}, v247
            v_mul_u32_u24 v{vB_}, 160, v246
            v_lshl_add_u32 v{vB_}, v247, 1, v{vB_}
            v_mov_b32 v247, {OOB}
            v_cmp_eq_u32 vcc, 0, v0
            v_cndmask_b32 v4, v247, v0, vcc
            v_mov_b32 v5, s{s_tag}
            """)
        a("s_waitcnt lgkmcnt(0)")
        r1 = reads(i, 1)
        emit(mix(mfmas(i, 0), ["\n".join(r1[2*k:2*k+2]) for k in range(6)]))
        a("s_waitcnt lgkmcnt(0)")
    a("s_barrier")
    emit(mfmas(9, 1))
    stamp(a, "gemm")
    for tau in range(5):
        for st, dst in ((0, KS), (1, VS)):
            for i in range(2):
                a(f"v_cvt_pk_bf16_f32 v{dst+2*tau+i}, v{acc(tau,st)+2*i}, v{acc(tau,st)+2*i+1}")
    aphi = lambda tau: (16 + 10 * tau) if tau < 4 else VS
    def load_aphi(tau):
        return [f"{TR} v[{aphi(tau)+2*j}:{aphi(tau)+2*j+1}], v{vPH} offset:{160*j + 8*tau}" for j in range(5)]
    for tau in range(4):
        emit(load_aphi(tau))
    for n in range(10):
        a(f"v_permlane32_swap_b32 v{KS+n}, v{VS+n}")
    for j in range(5):
        a(f"ds_write_b64 v{vA}, v[{VS+2*j}:{VS+2*j+1}] offset:{VB + 8*j}")
    emit(load_aphi(4))
    a("s_waitcnt lgkmcnt(10)")
    for tau in range(4):
        a(f"{MF16} {vr(PP+4*tau,4)}, {vr(aphi(tau)+8,2)}, {vr(KS+8,2)}, 0")
    a("s_waitcnt lgkmcnt(0)")
    a(f"{MF16} {vr(PP+16,4)}, {vr(aphi(4)+8,2)}, {vr(KS+8,2)}, 0")
    for kap in range(2):
        for tau in range(5):
            A = aphi(tau); D = vr(PP + 4 * tau, 4)
            a(f"{MF32} {D}, {vr(A+4*kap,4)}, {vr(KS+4*kap,4)}, {D}")
    softmax(a, PP, 16, 56, (56, 58, 60))
    for j in range(5):
        a(f"ds_write_b128 v{vB_}, {vr(56+4*j,4)} offset:{PKB + 16*j}")
    a("s_waitcnt vmcnt(0) lgkmcnt(0)\ns_barrier")
    stamp(a, "smk")
    a(f"buffer_store_dword v5, v4, {S(sWS)}, s35 offen sc1")
    KA, KB, KC = 76, 16, 64
    for ks in range(4):
        for hf in range(2):
            r = KA + ks * 4 + hf * 2
            a(f"{TR} v[{r}:{r+1}], v{vKA} offset:{VB + ks*3072 + hf*1536}")
    for ks in range(4):
        for ph in range(3):
            for hf in range(2):
                r = KB + (ks * 3 + ph) * 4 + hf * 2
                a(f"{TR} v[{r}:{r+1}], v{vKB} offset:{PKB + ks*5120 + hf*2560 + 32*ph}")
        if ks == 1:
            a(f"v_mov_b32 v6, 0x3f803f80\ns_waitcnt lgkmcnt(12)")
            for r in range(16):
                a(f"v_cndmask_b32 v{KA+r}, v{KA+r}, v6, s[{s_m0b}:{s_m0b+1}]")
    for ks in range(4):
        a(f"s_waitcnt lgkmcnt({min(12, 6*(3-ks))})")
        for ph in range(3):
            D = vr(KC + 4 * ph, 4)
            a(f"{MF32} {D}, {vr(KA+4*ks,4)}, {vr(KB+(ks*3+ph)*4,4)}, {'0' if ks == 0 else D}")
    vQR, vQR2, vPQ, vWO, vFLG = 1, 2, 3, 4, 12
    a(f"""
    v_bfe_u32 v92, v0, 4, 2
    v_bfe_u32 v93, v0, 2, 2
    v_lshl_add_u32 v94, v92, 3, v93
    v_mul_u32_u24 v{vQR}, 80, v94
    v_bfe_u32 v94, v0, 1, 1
    v_mul_u32_u24 v94, 40, v94
    v_and_b32 v95, 1, v0
    v_mul_u32_u24 v4, 24, v95
    v_add3_u32 v{vQR}, v{vQR}, v94, v4
    """)
    for ph in range(3):
        a(f"v_cvt_pk_bf16_f32 v{KA+2*ph}, v{KC+4*ph}, v{KC+4*ph+1}")
        a(f"v_cvt_pk_bf16_f32 v{KA+2*ph+1}, v{KC+4*ph+2}, v{KC+4*ph+3}")
        a(f"buffer_store_dwordx2 v[{KA+2*ph}:{KA+2*ph+1}], v{vST0 if ph < 2 else vST1}, {S(sWS)}, s{sKV} offen offset:{128*ph} sc1")
    stamp(a, "pub1")
    QF, QACC = 16, 64
    a("s_barrier")
    qacc = lambda tau, st: QACC + (tau * 2 + st) * 4
    qloc = {0: (vQR, QA), 1: (vQR, QB), 2: (vQR2, QC - QD), 3: (vQR2, 0), 4: (vQR, QA)}
    def q_read(hc):
        reg, base = qloc[hc // 2]
        r_ = []
        for ks in range(2):
            for tau in range(3):
                for hf in range(2):
                    r = QF + (hc & 1) * 24 + (ks * 3 + tau) * 4 + hf * 2
                    r_.append(f"{TR} v[{r}:{r+1}], v{reg} offset:{base + ((hc&1)*2+ks)*2560 + hf*320 + 8*tau}")
        return r_
    def q_mfma(hc):
        m_ = []
        for ks in range(2):
            for tau in range(3):
                for st in range(2):
                    D = vr(qacc(tau, st), 4)
                    m_.append(f"{MF32} {D}, {vr(QF+(hc&1)*24+(ks*3+tau)*4,4)}, {vr(xf(hc,ks,st),4)}, {'0' if (hc == 0 and ks == 0) else D}")
        return m_
    AQ = 96
    emit(q_read(0)); emit(q_read(1))
    a(f"""
    v_add_u32 v{vQR2}, {QD}, v{vQR}
    v_lshrrev_b32 v94, 1, v92
    v_cmp_eq_u32 vcc, v94, v95
    v_mul_u32_u24 v94, 960, v94
    v_and_b32 v92, 1, v92
    v_mul_u32_u24 v92, 12, v92
    v_add_u32 v92, v92, v93
    v_mul_u32_u24 v92, 40, v92
    v_add_u32 v92, v92, v94
    v_add_u32 v92, {WPHI}, v92
    v_mov_b32 v93, {ZERO}
    v_cndmask_b32 v{vPQ}, v93, v92, vcc
    v_and_b32 v92, 63, v0
    v_mul_u32_u24 v93, 6554, v92
    v_lshrrev_b32 v93, 16, v93
    v_mul_u32_u24 v94, 10, v93
    v_sub_u32 v92, v92, v94
    s_mul_i32 s{s_t0}, s{s_w}, 5
    v_add_u32 v93, s{s_t0}, v93
    v_mul_u32_u24 v93, 1280, v93
    v_lshl_add_u32 v93, v92, 4, v93
    s_mul_i32 s{s_t0}, s{s_cb}, 160
    v_add_u32 v{vWO}, s{s_t0}, v93
    s_mul_i32 s{s_xm0}, s{s_w}, 800
    v_and_b32 v92, 15, v0
    s_lshl_b32 s{s_t0}, s{s_hp}, 4
    v_add_u32 v93, s{s_t0}, v92
    s_lshr_b32 s{s_t0}, s{s_rb2}, 1
    v_lshl_add_u32 v94, v92, 4, s{s_t0}
    v_and_b32 v92, 16, v0
    v_cmp_eq_u32 vcc, 0, v92
    v_cndmask_b32 v93, v94, v93, vcc
    v_lshlrev_b32 v93, 8, v93
    v_add_u32 v{vFLG}, {WS_FL}, v93
    """)
    WSL = {0: 25600, 1: 51200, 2: 0, 3: 25600}
    def dma_wo(unit):
        g = []
        for rd in range(8):
            g.append(f"""s_add_u32 m0, s{s_xm0}, {WSL[unit] + rd*3200}
            s_mov_b32 s{s_t3}, {(unit*160 + rd*20)*1280}
            s_mov_b32 exec_hi, 0x3ffff
            buffer_load_dwordx4 v{vWO}, {S(sWO)}, s{s_t3} offen lds
            s_mov_b32 exec_hi, -1""")
        return g
    a("s_waitcnt lgkmcnt(12)"); emit(q_mfma(0))
    a("s_waitcnt lgkmcnt(0)\ns_barrier")
    emit(q_read(2)); emit(mix(q_mfma(1), dma_q(4, QA), 0, 4))
    w0 = dma_wo(0)
    for hc in range(2, 8):
        a("s_waitcnt lgkmcnt(0)")
        if hc < 7:
            nxt = q_read(hc + 1)
        else:
            nxt = [f"{TR} v[{AQ+6*tp+2*j}:{AQ+6*tp+2*j+1}], v{vPQ} offset:{160*j + 8*tp}" for tp in range(5) for j in range(3)]
        fill = ["\n".join(nxt[2*k:2*k+2]) for k in range((len(nxt) + 1) // 2)]
        if hc < 6:
            fill += w0[2*(hc-2):2*(hc-2)+2]
        emit(mix(q_mfma(hc), fill))
    a("s_waitcnt vmcnt(8) lgkmcnt(0)\ns_barrier")
    emit(q_read(8)); emit(q_read(9))
    EX = 128
    vEX, vKW, vA2, vOS0, vOS1 = 5, 6, 7, 8, 9
    KVB2, ZERO2 = 76800, 80640
    a(f"""
    v_lshlrev_b32 v{vEX}, 4, v0
    v_cmp_gt_u32 vcc, 240, v0
    v_mov_b32 v92, {OOB}
    v_cndmask_b32 v{vEX}, v92, v{vEX}, vcc
    s_lshl_b32 s{s_t4}, s{s_hp}, 16
    v_mov_b32 v88, 0
    v_mov_b32 v89, 0
    v_mov_b32 v90, 0
    v_mov_b32 v91, 0
    v_and_b32 v92, 63, v0
    v_lshlrev_b32 v{vOS0}, 4, v92
    v_add_u32 v92, {ZERO2}, v{vOS0}
    ds_write_b128 v92, v[88:91]
    """)
    w1 = dma_wo(1)
    adr = L()
    adr(f"""
    v_mul_u32_u24 v92, 3277, v0
    v_lshrrev_b32 v92, 16, v92
    v_mul_u32_u24 v93, 20, v92
    v_sub_u32 v93, v0, v93
    v_mul_u32_u24 v93, 96, v93
    v_and_b32 v94, 1, v92
    v_mul_u32_u24 v94, 1920, v94
    v_lshrrev_b32 v92, 1, v92
    v_lshl_add_u32 v92, v92, 3, v93
    v_add_u32 v92, v92, v94
    v_add_u32 v{vKW}, {KVB2}, v92
    v_bfe_u32 v92, v0, 4, 1
    v_bfe_u32 v93, v0, 1, 1
    v_cmp_eq_u32 vcc, v92, v93
    v_mul_u32_u24 v92, 40, v92
    v_bfe_u32 v93, v0, 5, 1
    v_mul_u32_u24 v93, 20, v93
    v_bfe_u32 v94, v0, 2, 2
    v_add3_u32 v92, v92, v93, v94
    v_mul_u32_u24 v92, 48, v92
    v_and_b32 v93, 1, v0
    v_mul_u32_u24 v93, 24, v93
    v_add_u32 v92, v92, v93
    v_add_u32 v92, {KVB2}, v92
    v_mov_b32 v93, {ZERO2}
    v_cndmask_b32 v{vA2}, v93, v92, vcc
    v_and_b32 v92, 15, v0
    v_lshlrev_b32 v92, 4, v92
    v_bfe_u32 v93, v0, 5, 1
    v_lshl_add_u32 v92, v93, 3, v92
    v_and_b32 v93, 16, v0
    v_cmp_eq_u32 vcc, 0, v93
    v_mov_b32 v93, {OOB}
    v_cndmask_b32 v{vOS1}, v93, v92, vcc
    """)
    adr2 = ["\n".join(adr[2*k:2*k+2]) for k in range(len(adr) // 2)]
    a("s_waitcnt lgkmcnt(13)")
    emit(mix(mix(q_mfma(8), w1[:4], 0, 3), adr2[:8], 2, 2))
    a("s_waitcnt lgkmcnt(0)\ns_barrier")
    emit(mix(mix(q_mfma(9), w1[4:], 0, 3), adr2[8:], 2, 2))
    stamp(a, "qgemm")
    def ex1_loads():
        g = [f"s_mov_b32 exec_hi, 0\nbuffer_load_dword v13, v{vFLG}, {S(sWS)}, 0 offen sc1\ns_mov_b32 exec_hi, -1"]
        for p in range(16):
            g.append(f"s_add_u32 s{s_t0}, s{s_t4}, {4096*p}\nbuffer_load_dwordx4 {vr(EX+4*p,4)}, v{vEX}, {S(sWS)}, s{s_t0} offen sc1")
        return g
    QP = 16
    sec = L()
    for st in range(2):
        for tau in range(3):
            for i in range(2):
                sec(f"v_cvt_pk_bf16_f32 v{QP+6*st+2*tau+i}, v{qacc(tau,st)+2*i}, v{qacc(tau,st)+2*i+1}")
    P0, P1 = 192, 212
    for st, PB in ((0, P0), (1, P1)):
        for tp in range(5):
            sec(f"{MF16} {vr(PB+4*tp,4)}, {vr(AQ+6*tp+4,2)}, {vr(QP+6*st+4,2)}, 0")
    for tp in range(5):
        for st, PB in ((0, P0), (1, P1)):
            D = vr(PB + 4 * tp, 4)
            sec(f"{MF32} {D}, {vr(AQ+6*tp,4)}, {vr(QP+6*st,4)}, {D}")
    for n in range(20):
        sec(f"v_permlane32_swap_b32 v{P0+n}, v{P1+n}")
    QO = 232
    softmax(sec, P0, 16, QO, (QO, QO + 2, QO + 4))
    for n in range(10):
        sec(f"v_permlane32_swap_b32 v{QO+n}, v{QO+10+n}")
    emit(mix(sec, ex1_loads(), 10, 8))
    stamp(a, "smq")
    SM = 16
    a(f"s_mov_b32 s{s_spin}, 0\ns_mov_b32 s{s_t5}, 0xffff0000")
    a("L_B_ex1:")
    for p in range(16):
        a(f"s_waitcnt vmcnt({15-p})")
        for d in range(4):
            src = EX + 4 * p + d
            o = 0 if p == 0 else 8
            a(f"v_lshlrev_b32 v{SM+o+2*d}, 16, v{src}")
            a(f"v_and_b32 v{SM+o+2*d+1}, s{s_t5}, v{src}")
        if p:
            for d in range(4):
                a(f"v_pk_add_f32 v[{SM+2*d}:{SM+2*d+1}], v[{SM+2*d}:{SM+2*d+1}], v[{SM+8+2*d}:{SM+8+2*d+1}]")
    a(f"""
    v_pk_add_f32 v[{SM+8}:{SM+9}], v[{SM}:{SM+1}], v[{SM+2}:{SM+3}]
    v_pk_add_f32 v[{SM+10}:{SM+11}], v[{SM+4}:{SM+5}], v[{SM+6}:{SM+7}]
    v_add_f32 v{SM+8}, v{SM+8}, v{SM+10}
    v_cmp_ne_u32 s[{s_m0a}:{s_m0a+1}], s{s_tag}, v13
    v_cmp_u_f32 vcc, v{SM+8}, v{SM+8}
    s_mov_b32 s{s_m0a+1}, 0
    s_or_b64 vcc, vcc, s[{s_m0a}:{s_m0a+1}]
    s_cbranch_scc0 L_B_ex1_done
    v_and_b32 v92, 15, v0
    v_lshlrev_b32 v92, 12, v92
    v_bfe_u32 v93, v0, 4, 2
    v_and_b32 v94, 1, v93
    v_mul_u32_u24 v94, 2560, v94
    v_lshrrev_b32 v93, 1, v93
    v_mul_u32_u24 v93, 320, v93
    v_add3_u32 v92, v92, v93, v94
    L_B_ex1_poll:
    s_mov_b32 exec_hi, 0
    buffer_load_dword v13, v{vFLG}, {S(sWS)}, 0 offen sc1
    s_mov_b32 exec_hi, -1
    buffer_load_dword v93, v92, {S(sWS)}, s{s_t4} offen offset:256 sc1
    s_add_u32 s{s_spin}, s{s_spin}, 1
    s_cmp_ge_u32 s{s_spin}, {SPIN_MAX}
    s_cbranch_scc1 L_B_ex1_done
    s_waitcnt vmcnt(0)
    v_cmp_ne_u32 s[{s_m0a}:{s_m0a+1}], s{s_tag}, v13
    v_cmp_eq_u32 vcc, -1, v93
    s_mov_b32 s{s_m0a+1}, 0
    s_or_b64 vcc, vcc, s[{s_m0a}:{s_m0a+1}]
    s_cbranch_scc1 L_B_ex1_poll
    """)
    emit(ex1_loads())
    a("s_branch L_B_ex1\nL_B_ex1_done:")
    for d in range(4):
        a(f"v_cvt_pk_bf16_f32 v{SM+8+d}, v{SM+2*d}, v{SM+2*d+1}")
    a(f"""
    v_cmp_gt_u32 vcc, 240, v0
    s_and_saveexec_b64 s[{s_ex}:{s_ex+1}], vcc
    ds_write2_b64 v{vKW}, v[{SM+8}:{SM+9}], v[{SM+10}:{SM+11}] offset1:6
    s_mov_b64 exec, s[{s_ex}:{s_ex+1}]
    s_waitcnt lgkmcnt(0)
    s_barrier
    """)
    stamp(a, "ex1")
    if PROF[0]: a(f"s_mov_b32 s6, s{s_spin}")
    A2, C2 = 32, 64
    for j in (4, 0, 1, 2, 3):
        for tau in range(3):
            a(f"{TR} v[{A2+10*tau+2*j}:{A2+10*tau+2*j+1}], v{vA2} offset:{192*j + 8*tau}")
    vWM, vWL, vOUT, vWM2, vWL2 = 1, 3, 5, 6, 7
    a(f"""
    v_bfe_u32 v92, v0, 5, 1
    v_mul_u32_u24 v92, 20, v92
    v_bfe_u32 v93, v0, 4, 1
    v_mul_u32_u24 v93, 12, v93
    v_bfe_u32 v94, v0, 2, 2
    v_add3_u32 v92, v92, v93, v94
    v_mul_u32_u24 v92, 160, v92
    v_and_b32 v95, 3, v0
    v_mul_u32_u24 v95, 40, v95
    v_add_u32 v{vWM}, v92, v95
    s_add_u32 s{s_t3}, s{sOM}, 20480
    s_add_u32 s{s_t4}, s{sOL}, 20480
    s_waitcnt lgkmcnt(12)
    """)
    for st in range(2):
        for tau in range(3):
            D = vr(C2 + (st * 3 + tau) * 4, 4); A = A2 + 10 * tau; B = QO + 10 * st
            a(f"{MF16} {D}, {vr(A+8,2)}, {vr(B+8,2)}, 0")
    a("s_waitcnt lgkmcnt(0)")
    for st in range(2):
        for kap in range(2):
            for tau in (2, 0, 1):
                D = vr(C2 + (st * 3 + tau) * 4, 4); A = A2 + 10 * tau; B = QO + 10 * st
                a(f"{MF32} {D}, {vr(A+4*kap,4)}, {vr(B+4*kap,4)}, {D}")
    for st in range(2):
        c = C2 + st * 12
        d0, d1 = (12, 14) if st == 0 else (2, 10)
        a(f"v_mov_b32 v{d0}, v{c+8}\nv_mov_b32 v{d1}, v{c+8}")
        a(f"v_permlane16_swap_b32 v{d0}, v{d1}")
        a(f"v_add_f32 v{d1}, 0x358637bd, v{d1}\nv_rcp_f32 v{d1}, v{d1}")
        for i in range(0, 12, 2):
            a(f"v_pk_mul_f32 v[{c+i}:{c+i+1}], v[{c+i}:{c+i+1}], v[{d1}:{d1+1}] op_sel:[0,0] op_sel_hi:[1,0]")
        o = 16 + 8 * st
        for i in range(6):
            a(f"v_cvt_pk_bf16_f32 v{o+i}, v{c+2*i}, v{c+2*i+1}")
        a(f"buffer_store_dwordx4 {vr(o,4)}, v{vOS0}, {S(sWS)}, s{sOM if st == 0 else s_t3} offen sc1")
        a(f"buffer_store_dwordx2 {vr(o+4,2)}, v{vOS1}, {S(sWS)}, s{sOL if st == 0 else s_t4} offen sc1")
    stamp(a, "pub2")
    W0R, WSR, C3 = 156, 96, 136
    OF = 16
    a(f"""
    v_bfe_u32 v92, v0, 4, 2
    v_mul_u32_u24 v93, 40, v92
    v_add3_u32 v94, v93, v94, 8
    v_mul_u32_u24 v94, 160, v94
    v_add_u32 v{vWL}, v94, v95
    v_add_u32 v{vWM2}, 25600, v{vWM}
    v_add_u32 v{vWL2}, 25600, v{vWL}
    v_and_b32 v94, 15, v0
    s_lshl_b32 s{s_t0}, s{s_rb2}, 2
    s_add_u32 s{s_t0}, s{s_t0}, s{s_w}
    s_lshl_b32 s{s_t1}, s{s_t0}, 4
    v_add_u32 v94, s{s_t1}, v94
    v_mul_u32_u24 v94, 2560, v94
    s_mul_i32 s{s_t1}, s{s_cb}, 160
    s_add_u32 s{s_t1}, s{s_t1}, 1280
    v_add3_u32 v{vOUT}, v94, v93, s{s_t1}
    s_mul_i32 s{s_t4}, s{s_t0}, 20480
    s_add_u32 s{s_t4}, s{s_t4}, {WS_O}
    s_add_u32 s{s_t5}, s{s_t4}, 16384
    """)
    def wo_read(u, j, dst):
        sl = WSL[u]; r_ = []
        for tau in range(5):
            for hf in range(2):
                r = dst + 4 * tau + 2 * hf
                if j < 4:
                    reg, off = (vWM, sl) if sl < 25600 else (vWM2, sl - 25600)
                    off += j * 6400 + hf * 640 + 8 * tau
                else:
                    reg, off = (vWL, sl) if sl < 25600 else (vWL2, sl - 25600)
                    off += hf * 3200 + 8 * tau
                r_.append(f"{TR} v[{r}:{r+1}], v{reg} offset:{off}")
        return r_
    rd0 = [x for j in range(5) for x in wo_read(0, j, W0R + 20 * j)]
    emit(mix(rd0, dma_wo(2), 0, 6))
    for r in range(20):
        a(f"v_mov_b32 v{C3+r}, 0")
    a("s_waitcnt lgkmcnt(0)\ns_barrier")
    emit(dma_wo(3))
    stamp(a, "wo")
    a(f"s_mov_b32 s{s_spin}, 0\ns_mov_b32 s{s_pend}, 15\ns_mov_b32 s{s_kc}, 0")
    a("L_B_ex2:")
    for u in range(4):
        a(f"s_bitcmp1_b32 s{s_pend}, {u}\ns_cbranch_scc0 L_B_ld{u}")
        a(f"s_add_u32 s{s_t0}, s{s_t4}, {4096*u}")
        for j in range(4):
            a(f"buffer_load_dwordx4 {vr(OF+20*u+4*j,4)}, v{vOS0}, {S(sWS)}, s{s_t0} offen offset:{1024*j} sc1")
        a(f"buffer_load_dwordx4 {vr(OF+20*u+16,4)}, v{vOS0}, {S(sWS)}, s{s_t5} offen offset:{1024*u} sc1")
        a(f"L_B_ld{u}:")
    a(f"""
    s_cmp_lg_u32 s{s_kc}, 0
    s_cbranch_scc1 L_B_nobar
    s_mov_b32 s{s_kc}, 1
    s_waitcnt vmcnt(20)
    s_barrier
    L_B_nobar:
    s_add_u32 s{s_spin}, s{s_spin}, 1
    """)
    for u in range(4):
        a(f"s_bitcmp1_b32 s{s_pend}, {u}\ns_cbranch_scc0 L_B_mm{u}")
        if u:
            emit(wo_read(u, 0, WSR)); emit(wo_read(u, 1, WSR + 20))
        a(f"s_cmp_eq_u32 s{s_spin}, 1\ns_cbranch_scc1 L_B_w{u}\ns_waitcnt vmcnt(0)\nL_B_w{u}:\ns_waitcnt vmcnt({5*(3-u)})")
        o = OF + 20 * u
        a(f"v_max3_u32 v12, v{o}, v{o+1}, v{o+2}")
        a(f"v_max3_u32 v13, v{o+3}, v{o+4}, v{o+5}")
        for k in range(6, 18, 4):
            a(f"v_max3_u32 v12, v12, v{o+k}, v{o+k+1}")
            a(f"v_max3_u32 v13, v13, v{o+k+2}, v{o+k+3}")
        a(f"v_max3_u32 v12, v12, v{o+18}, v{o+19}")
        a(f"""
        v_max_u32 v12, v12, v13
        v_cmp_eq_u32 vcc, -1, v12
        s_cmp_ge_u32 s{s_spin}, {SPIN_MAX}
        s_cbranch_scc1 L_B_go{u}
        s_cbranch_vccnz L_B_mm{u}
        L_B_go{u}:
        s_bitset0_b32 s{s_pend}, {u}
        """)
        for j in range(5):
            wb = (W0R + 20 * j) if u == 0 else (WSR + 20 * (j & 1))
            mm = [f"{MF32} {vr(C3+4*tau,4)}, {vr(wb+4*tau,4)}, {vr(o+4*j,4)}, {vr(C3+4*tau,4)}" for tau in range(5)]
            if u:
                a(f"s_waitcnt lgkmcnt({10 if j < 4 else 0})")
                emit(mm)
                if j + 2 < 5:
                    emit(wo_read(u, j + 2, WSR + 20 * (j & 1)))
            else:
                emit(mm)
        a(f"L_B_mm{u}:")
    a(f"""
    s_cmp_lg_u32 s{s_pend}, 0
    s_cbranch_scc1 L_B_ex2
    """)
    stamp(a, "ex2")
    if PROF[0]: a(f"s_mov_b32 s7, s{s_spin}")
    for i in range(10):
        a(f"v_cvt_pk_bf16_f32 v{16+i}, v{C3+2*i}, v{C3+2*i+1}")
    a(f"""
    buffer_store_dwordx4 v[16:19], v{vOUT}, {S(sO)}, 0 offen
    buffer_store_dwordx4 v[20:23], v{vOUT}, {S(sO)}, 0 offen offset:16
    buffer_store_dwordx2 v[24:25], v{vOUT}, {S(sO)}, 0 offen offset:32
    s_cmp_lg_u32 s2, 0
    s_cbranch_scc1 L_B_fin
    v_mov_b32 v1, {OOB}
    v_cmp_eq_u32 vcc, 0, v0
    v_cndmask_b32 v1, v1, v0, vcc
    v_mov_b32 v2, s{s_tag}
    s_mov_b32 s{s_t0}, {WS_EP}
    buffer_store_dword v2, v1, {S(sWS)}, s{s_t0} offen sc1
    L_B_fin:
    """)
    stamp(a, "g2")
    if PROF[0]: a("s_waitcnt vmcnt(0)")
    prof_end(a, "B")
    a("s_endpgm")
```

```python
import sys, importlib
sys.path.insert(0, "gen")
from dsl import *
import genb, gena
NAME = "concat_heads__ssm_conv_s4__linear_kernel_hedgehog__prompt"
def build(opts=None):
    opts = opts or {}
    a = Asm()
    genb.PROF[0] = bool(opts.get('prof'))
    genb.SPAN[0] = bool(opts.get('span'))
    if opts.get("afirst", "1") == "1":
        a(f"""
        s_sub_u32 s3, s2, {genb.NA}
        s_add_u32 s2, s2, {genb.NB}
        s_cmp_lt_u32 s3, {genb.NB}
        s_cbranch_scc0 L_A
        s_mov_b32 s2, s3
        """)
    else:
        a(f"""
        s_cmp_lt_u32 s2, {genb.NB}
        s_cbranch_scc0 L_A
        """)
    if opts.get("noB"): a("s_endpgm")
    genb.gen_b(a, opts.get('dbg'))
    gena.gen_a(a, opts)
    body = a.render()
    ref = open(f"cdna_kernels/{NAME}.s.ref").read()
    hdr = [l for l in ref.split("\n") if l.startswith(";") and "@launch" not in l]
    out = "\n".join(hdr) + f"\n; @launch grid=({genb.NB+genb.NA},1,1) block=(256,1,1) lds=81920\n"
    out += f'.amdgcn_target "amdgcn-amd-amdhsa--gfx950"\n.text\n.globl {NAME}_kernel\n.p2align 8\n.type {NAME}_kernel,@function\n{NAME}_kernel:\n'
    out += body
    out += f""".section .rodata,"a"
.p2align 6
.amdhsa_kernel {NAME}_kernel
  .amdhsa_next_free_vgpr 256
  .amdhsa_next_free_sgpr 102
  .amdhsa_accum_offset 256
  .amdhsa_group_segment_fixed_size 0
  .amdhsa_kernarg_size 128
  .amdhsa_user_sgpr_count 2
  .amdhsa_user_sgpr_kernarg_segment_ptr 1
  .amdhsa_system_sgpr_workgroup_id_x 1
.end_amdhsa_kernel
"""
    print("nops inserted:", a.nops, "instrs:", sum(1 for i in a.items if not isinstance(i, tuple)))
    return out
if __name__ == "__main__":
    dst = sys.argv[1] if len(sys.argv) > 1 else f"cdna_kernels/{NAME}.s"
    opts = dict(x.split('=') for x in sys.argv[2:])
    open(dst, "w").write(build(opts))
```
